```python
import torch

def _softmax(x, axis=-1):
    return torch.softmax(x, dim=axis)
def _gelu(x):
    return torch.nn.functional.gelu(x, approximate="tanh")
def _silu(x):
    return torch.nn.functional.silu(x)
def _sigmoid(x):
    return torch.sigmoid(x)
def _layernorm(x, axis=-1, eps=1e-5):
    m = x.mean(dim=axis, keepdim=True)
    v = x.var(dim=axis, keepdim=True, unbiased=False)
    return (x - m) / torch.sqrt(v + eps)
def _scatter_add(tgt, idx, src, axis=0):
    return tgt.clone().index_add_(axis, idx, src)
def _segment_sum(src, seg, n):
    out = torch.zeros((n,) + src.shape[1:], dtype=src.dtype)
    return out.index_add_(0, seg, src)
def _pad(x, pw):
    flat = tuple(v for pair in reversed(pw) for v in pair)
    return torch.nn.functional.pad(x, flat)

kernel_name = 'recurrent_scan__ssm_conv_s5__mixer_s_mlp__prompt'

def setup_inputs():

    _w = (lambda a: (lambda t: t.to(torch.bfloat16) if t.is_floating_point() else t)(torch.as_tensor(a)))
    def _A_setup():
        B, S, D = 1, 2048, 640
        P = D
        Lambda_re = -0.5 * (lambda _x: torch.exp(torch.as_tensor(_x)))((lambda *s: torch.randn(*s, dtype=torch.bfloat16) * 0.2)(P))
        Lambda_im = (lambda *s: torch.randn(*s, dtype=torch.bfloat16) * 0.4)(P) * 1.0
        B_re = (lambda *s: torch.randn(*s, dtype=torch.bfloat16) * 0.2)(P, D) * (D ** -0.5)
        B_im = (lambda *s: torch.randn(*s, dtype=torch.bfloat16) * 0.2)(P, D) * (D ** -0.5)
        C_re = (lambda *s: torch.randn(*s, dtype=torch.bfloat16) * 0.2)(D, P) * (P ** -0.5)
        C_im = (lambda *s: torch.randn(*s, dtype=torch.bfloat16) * 0.2)(D, P) * (P ** -0.5)
        log_dt = (lambda *s: torch.randn(*s, dtype=torch.bfloat16) * 0.2)(P) * 0.3 - 2.0
        Dskip = (lambda *s: torch.randn(*s, dtype=torch.bfloat16) * 0.05)(D)
        return {
            "x": _w((lambda *s: torch.randn(*s, dtype=torch.bfloat16) * 0.05)(B, S, D)),
            "Lambda_re": _w(Lambda_re),
            "Lambda_im": _w(Lambda_im),
            "B_re": _w(B_re),
            "B_im": _w(B_im),
            "C_re": _w(C_re),
            "C_im": _w(C_im),
            "log_dt": _w(log_dt),
            "Dskip": _w(Dskip),
        }
    _A_in = _A_setup()

    def _B_setup():
        B, S, D, F = 1, 2048, 640, 1536
        return {
            "x":  _w((lambda *s: torch.randn(*s, dtype=torch.bfloat16) * 0.05)(B, S, D)),
            "w1": _w((lambda *s: torch.randn(*s, dtype=torch.bfloat16) * 3.2)(D, D) * (D ** -0.5)),
            "w2": _w((lambda *s: torch.randn(*s, dtype=torch.bfloat16) * 3.2)(D, D) * (D ** -0.5)),
            "w3": _w((lambda *s: torch.randn(*s, dtype=torch.bfloat16) * 3.2)(D, F) * (D ** -0.5)),
            "w4": _w((lambda *s: torch.randn(*s, dtype=torch.bfloat16) * 1.6)(F, D) * (F ** -0.5)),
        }
    _B_in = _B_setup()

    return {
        "A_x": _A_in["x"],
        "A_Lambda_re": _A_in["Lambda_re"],
        "A_Lambda_im": _A_in["Lambda_im"],
        "A_B_re": _A_in["B_re"],
        "A_B_im": _A_in["B_im"],
        "A_C_re": _A_in["C_re"],
        "A_C_im": _A_in["C_im"],
        "A_log_dt": _A_in["log_dt"],
        "A_Dskip": _A_in["Dskip"],
        "B_x": _B_in["x"],
        "B_w1": _B_in["w1"],
        "B_w2": _B_in["w2"],
        "B_w3": _B_in["w3"],
        "B_w4": _B_in["w4"],
    }

def reference(A_x, A_Lambda_re, A_Lambda_im, A_B_re, A_B_im, A_C_re, A_C_im, A_log_dt, A_Dskip, B_x, B_w1, B_w2, B_w3, B_w4):
    def _A_ref(x, Lambda_re, Lambda_im, B_re, B_im, C_re, C_im, log_dt, Dskip):
        Bsz, L, H = x.shape
        Lam = Lambda_re + 1j * Lambda_im
        Bmat = B_re + 1j * B_im
        Cmat = C_re + 1j * C_im
        dt = torch.exp(log_dt)
        Lam_bar = torch.exp(dt * Lam)
        B_bar = ((Lam_bar - 1.0) / Lam)[:, None] * Bmat
        Bu = torch.einsum("bld,pd->blp", x + 0j, B_bar)
        h = torch.zeros_like(Bu[:, 0, :])
        hs = []
        for t in range(L):
            h = Lam_bar[None, :] * h + Bu[:, t, :]
            hs.append(h)
        hseq = torch.stack(hs, 1)
        y = 2.0 * torch.einsum("blp,dp->bld", hseq, Cmat).real + x * Dskip[None, None, :]
        return y

    def _B_ref(x, w1, w2, w3, w4):
        B, S, D = x.shape
        h = _gelu(_layernorm(x, axis=-1) @ w1)
        c = D // 4
        g0 = _pad(h[:, :, 0*c:1*c], ((0, 0), (1, 0), (0, 0)))[:, :S, :]
        g1 = _pad(h[:, :, 1*c:2*c], ((0, 0), (0, 1), (0, 0)))[:, 1:, :]
        g2 = _pad(h[:, :, 2*c:3*c], ((0, 0), (2, 0), (0, 0)))[:, :S, :]
        g3 = _pad(h[:, :, 3*c:   ], ((0, 0), (0, 2), (0, 0)))[:, 2:, :]
        hs = torch.concatenate([g0, g1, g2, g3], axis=-1) @ w2
        x1 = x + hs
        h2 = _gelu(_layernorm(x1, axis=-1) @ w3) @ w4
        return x1 + h2

    x = A_x
    xn = _layernorm(x, axis=-1)
    s = _A_ref(xn, A_Lambda_re, A_Lambda_im, A_B_re, A_B_im, A_C_re, A_C_im, A_log_dt, A_Dskip)
    g = _silu(_B_ref(xn, B_w1, B_w2, B_w3, B_w4))
    return x + s * g
```

```python
import re

TRANS = ("v_exp_f32", "v_log_f32", "v_rcp_f32", "v_rsq_f32", "v_sqrt_f32", "v_sin_f32", "v_cos_f32")

def _expand(tok):
    tok = tok.strip()
    neg = tok.startswith("-")
    if neg: tok = tok[1:]
    if tok.startswith("abs(") or tok.startswith("|"):
        tok = tok.replace("abs(", "").replace(")", "").replace("|", "")
    m = re.fullmatch(r"([vsa])\[(\d+):(\d+)\]", tok)
    if m:
        return [f"{m.group(1)}{i}" for i in range(int(m.group(2)), int(m.group(3)) + 1)]
    m = re.fullmatch(r"([vsa])(\d+)", tok)
    if m: return [tok]
    if tok in ("vcc",): return ["vcc"]
    if tok in ("vcc_lo", "vcc_hi"): return ["vcc"]
    if tok in ("exec", "exec_lo", "exec_hi"): return ["exec"]
    if tok == "m0": return ["m0"]
    return []

class Ins:
    __slots__ = ("op", "ops", "kind", "w", "r", "text", "passes", "srcc", "dpp", "slots", "lds_dma", "store_data")

def parse(text):
    t = text.split(";")[0].split("//")[0].strip()
    op, _, rest = t.partition(" ")
    ins = Ins(); ins.op = op; ins.text = text; ins.passes = 0; ins.srcc = []; ins.dpp = False
    ins.slots = 1; ins.lds_dma = False; ins.store_data = []
    parts = [p.strip() for p in rest.split(",")] if rest else []
    mods = ""
    if parts:
        rest2 = re.sub(r"(\w+):\[([^\]]*)\]", lambda m: m.group(1) + ":{" + m.group(2).replace(",", ";") + "}" if m.group(1) not in ("v", "s", "a") else m.group(0), rest)
        parts = [p.strip() for p in rest2.split(",")]
        last = parts[-1].split()
        if last:
            parts[-1] = last[0]; mods = " ".join(last[1:])
    ins.ops = parts
    w, r = [], []
    base = re.sub(r"_(e32|e64|dpp|sdwa)$", "", op)
    if op.startswith("s_nop"):
        ins.kind = "nop"; ins.slots = int(parts[0], 0) + 1
    elif op.startswith("v_mfma"):
        ins.kind = "mfma"
        ins.passes = 8 if "32x32x16" in op else 4 if "16x16x32" in op else 16
        w = _expand(parts[0]); r = _expand(parts[1]) + _expand(parts[2]) + _expand(parts[3]); ins.srcc = _expand(parts[3])
    elif op.startswith("v_cmp"):
        ins.kind = "valu"; w = _expand(parts[0]); r = sum((_expand(p) for p in parts[1:]), [])
    elif base in ("v_readfirstlane_b32", "v_readlane_b32"):
        ins.kind = "valu"; w = _expand(parts[0]); r = sum((_expand(p) for p in parts[1:]), [])
    elif base.startswith("v_permlane") and "swap" in base:
        ins.kind = "valu"; w = _expand(parts[0]) + _expand(parts[1]); r = list(w)
    elif op.startswith("v_"):
        ins.kind = "valu"
        w = _expand(parts[0]); r = sum((_expand(p) for p in parts[1:]), [])
        if base in ("v_add_co_u32", "v_sub_co_u32", "v_addc_co_u32", "v_subb_co_u32"):
            w += _expand(parts[1]); r = sum((_expand(p) for p in parts[2:]), [])
        if base in ("v_fmac_f32", "v_dot2c_f32_bf16", "v_pk_fmac_f16"):
            r += _expand(parts[0])
        if base == "v_cndmask_b32" and len(parts) == 3:
            r += ["vcc"]
        if "_dpp" in op or "quad_perm" in mods or "row_" in mods:
            ins.dpp = True
    elif op.startswith("buffer_") or op.startswith("global_"):
        ins.kind = "vmem"
        if op.startswith("buffer_inv") or op.startswith("buffer_wbl2"):
            pass
        elif "lds" in mods.split() or op.startswith("global_load_lds"):
            ins.lds_dma = True
            r = sum((_expand(p) for p in parts), []) + ["m0"]
        elif "_load_" in op:
            w = _expand(parts[0]); r = sum((_expand(p) for p in parts[1:]), [])
        elif op.startswith("buffer_store") or op.startswith("buffer_atomic"):
            r = sum((_expand(p) for p in parts), [])
            ins.store_data = _expand(parts[0])
            if op.startswith("buffer_atomic") and "sc0" in mods.split(): w = _expand(parts[0])
        else:
            r = sum((_expand(p) for p in parts), [])
            ins.store_data = _expand(parts[1])
    elif op.startswith("ds_"):
        ins.kind = "ds"
        if op.startswith("ds_read") or op.startswith("ds_bpermute") or op.startswith("ds_swizzle") or op.startswith("ds_permute"):
            w = _expand(parts[0]); r = sum((_expand(p) for p in parts[1:]), [])
        else:
            r = sum((_expand(p) for p in parts), [])
    elif op.startswith("s_"):
        ins.kind = "salu"
        if op.startswith(("s_cmp", "s_cbranch", "s_branch", "s_waitcnt", "s_barrier", "s_endpgm", "s_setprio", "s_sleep", "s_bitcmp")):
            r = sum((_expand(p) for p in parts), [])
        elif op.startswith(("s_load", "s_buffer_load", "s_memtime", "s_memrealtime")):
            ins.kind = "smem"; w = _expand(parts[0]); r = sum((_expand(p) for p in parts[1:]), [])
        else:
            w = _expand(parts[0]); r = sum((_expand(p) for p in parts[1:]), [])
            if "saveexec" in op: w += ["exec"]; r += ["exec"]
    else:
        raise ValueError("unknown op: " + text)
    ins.w = set(w); ins.r = set(r)
    return ins

def is_sgpr(x): return x[0] == "s" or x == "vcc"
def is_vgpr(x): return x[0] in "va" and x != "vcc"

def need(prev, cur):
    n = 0
    base = re.sub(r"_(e32|e64|dpp|sdwa)$", "", cur.op)
    pbase = re.sub(r"_(e32|e64|dpp|sdwa)$", "", prev.op)
    if prev.kind == "valu":
        vw = {x for x in prev.w if is_vgpr(x)}
        sw = {x for x in prev.w if is_sgpr(x)}
        if cur.kind == "mfma" and vw & cur.r: n = max(n, 2)
        if cur.kind == "valu":
            if pbase in TRANS and base not in TRANS and vw & (cur.r | cur.w): n = max(n, 1)
            if pbase in TRANS and base in TRANS and vw & cur.r: n = max(n, 1)
            if base.startswith("v_permlane") and vw & cur.r: n = max(n, 2)
            if base in ("v_readfirstlane_b32", "v_readlane_b32") and vw & cur.r: n = max(n, 1)
            if cur.dpp and vw & cur.r: n = max(n, 2)
            if sw & cur.r: n = max(n, 2)
            if base in ("v_readlane_b32", "v_writelane_b32") and sw & cur.r: n = max(n, 4)
        if pbase.startswith("v_dot"):
            if cur.kind == "valu" and base != pbase and vw & (cur.r | cur.w): n = max(n, 3)
            if cur.kind == "valu" and base == pbase and vw & (cur.r - cur.w): n = max(n, 3)
            if cur.kind in ("vmem", "ds", "mfma") and vw & cur.r: n = max(n, 3)
        if cur.kind == "vmem" and sw & cur.r: n = max(n, 5)
        if cur.kind in ("salu", "smem") and sw & cur.r: n = max(n, 2)
        if "exec" in prev.w and cur.kind == "valu" and cur.dpp: n = max(n, 5)
        if "exec" in prev.w and cur.kind == "mfma": n = max(n, 4)
    if prev.kind == "mfma":
        p = prev.passes
        D = prev.w
        if cur.kind == "mfma":
            if D & set(cur.srcc):
                same = (set(cur.srcc) == D and cur.op == prev.op)
                if not same: n = max(n, p + 2)
            ab = cur.r - set(cur.srcc)
            abregs = set(_expand(cur.ops[1]) + _expand(cur.ops[2]))
            if D & abregs: n = max(n, p + 4)
            if D & cur.w and not (D & set(cur.srcc)): n = max(n, p + 2)
        elif cur.kind == "valu":
            if D & (cur.r | cur.w): n = max(n, p + 4)
            if set(prev.srcc) & cur.w: n = max(n, p - 1)
        elif cur.kind in ("vmem", "ds"):
            if D & (cur.r | cur.w): n = max(n, p + 4)
    if prev.kind == "salu" and "m0" in prev.w and cur.lds_dma: n = max(n, 1)
    if prev.kind == "salu" and "exec" in prev.w and cur.kind == "valu" and cur.dpp: n = max(n, 5)
    if prev.kind == "vmem" and len(prev.store_data) >= 3:
        sd = set(prev.store_data)
        if cur.kind == "valu" and sd & cur.w: n = max(n, 2)
        elif sd & cur.w: n = max(n, 1)
    return n

class Asm:
    def __init__(self):
        self.lines = []
        self.hist = []
        self.nops = 0
        self.count = 0
    def raw(self, text):
        self.lines.append(text)
    def comment(self, text):
        self.lines.append("    ; " + text)
    def label(self, name):
        self.lines.append(name + ":")
    def flush_hist(self):
        self.hist = []
    def i(self, text):
        for sub in text.split("\n"):
            sub = sub.strip()
            if not sub: continue
            if sub.endswith(":") and " " not in sub:
                self.label(sub[:-1]); continue
            if sub.startswith(";"):
                self.lines.append("    " + sub); continue
            ins = parse(sub)
            dist = 0; req = 0
            for prev in reversed(self.hist):
                nd = need(prev, ins)
                if nd > dist: req = max(req, nd - dist)
                dist += prev.slots
                if dist > 24: break
            if req > 0:
                k = req
                while k > 0:
                    c = min(k, 16)
                    nop = parse(f"s_nop {c-1}")
                    self.lines.append(f"    s_nop {c-1}")
                    self.hist.append(nop); self.nops += c; k -= c
            self.lines.append("    " + sub)
            self.hist.append(ins)
            self.count += 1
            if len(self.hist) > 40: self.hist = self.hist[-40:]
    def text(self):
        return "\n".join(self.lines) + "\n"
```

```python
import sys, struct, math
sys.path.insert(0, "gen")
from asmlib import Asm

NAME = "recurrent_scan__ssm_conv_s5__mixer_s_mlp__prompt"
def al(x, a=4096): return (x + a - 1) // a * a
WS = {}
_o = 0
for nm, sz in [("XN", 2048*1280), ("HP", 2052*1280), ("U", 10*2048*256), ("AG", 2*32*640*8), ("X1", 2048*1280),
               ("PART", 10*2048*8), ("CS3", 1536*4), ("HC", 2048*2560), ("Z", 2048*3072), ("Y", 2048*2560)]:
    WS[nm] = (_o, sz); _o = al(_o + sz)
WS_TOTAL = _o

def fbits(x): return struct.unpack("<I", struct.pack("<f", x))[0]
def fhex(x): return "0x%08x" % fbits(x)

P_X, P_LRE, P_LIM, P_BRE, P_BIM, P_CRE, P_CIM, P_LDT = 8, 10, 12, 14, 16, 18, 20, 22
P_DSK, P_BX, P_W1, P_W2, P_W3, P_W4, P_OUT, P_DBG = 24, 26, 28, 30, 32, 34, 36, 38
P_WS = 40
SZ_ACT = 2048*1280
SZ_W640 = 640*1280

def srd(a, dst, ptr, size, off=0):
    if off:
        a.i(f"s_add_u32 s{dst}, s{ptr}, {off}")
        a.i(f"s_addc_u32 s{dst+1}, s{ptr+1}, 0")
    else:
        a.i(f"s_mov_b32 s{dst}, s{ptr}")
        a.i(f"s_mov_b32 s{dst+1}, s{ptr+1}")
    a.i(f"s_mov_b32 s{dst+2}, {size}")
    a.i(f"s_mov_b32 s{dst+3}, 0x20000")
def srd_ws(a, dst, nm):
    srd(a, dst, P_WS, WS[nm][1], WS[nm][0])

def prologue(a, kname, nwg):
    a.raw(f".globl {kname}\n.p2align 8\n.type {kname},@function\n{kname}:")
    a.flush_hist()
    a.i(f"s_cmp_ge_u32 s2, {nwg}")
    a.i(f"s_cbranch_scc1 {kname}_done")
    a.i("s_load_dwordx16 s[8:23], s[0:1], 0")
    a.i("s_load_dwordx16 s[24:39], s[0:1], 64")
    a.i("s_load_dwordx2 s[40:41], s[0:1], 128")
    a.i("v_and_b32 v1, 63, v0")
    a.i("v_lshrrev_b32 v2, 6, v0")
    a.i("v_readfirstlane_b32 s3, v2")

def kernel_end(a, kname):
    a.label(f"{kname}_done")
    a.i("s_endpgm")

def descriptor(kname, vgpr=256, sgpr=102):
    return (f".p2align 6\n.amdhsa_kernel {kname}\n  .amdhsa_next_free_vgpr {vgpr}\n  .amdhsa_next_free_sgpr {sgpr}\n"
            f"  .amdhsa_accum_offset {vgpr}\n  .amdhsa_group_segment_fixed_size 0\n  .amdhsa_kernarg_size 136\n"
            f"  .amdhsa_user_sgpr_count 2\n  .amdhsa_user_sgpr_kernarg_segment_ptr 1\n"
            f"  .amdhsa_system_sgpr_workgroup_id_x 1\n.end_amdhsa_kernel\n")

def vr(b, n): return f"v[{b}:{b+n-1}]" if n > 1 else f"v{b}"
def sr(b, n): return f"s[{b}:{b+n-1}]"

def bf16r(a, dst, src):
    a.i(f"v_cvt_pk_bf16_f32 v{dst}, v{src}, v{src}")
    a.i(f"v_lshlrev_b32 v{dst}, 16, v{dst}")

S_LW = 4
S_LDSW = 5
S_AB = 6
S_WB = 7
S_T0 = 42
S_T1 = 43

def loader_voff_R(a, dst, pitch, rowkind="nat", extra_rows=0):
    a.i("v_lshrrev_b32 v10, 3, v1")
    a.i("v_and_b32 v11, 7, v1")
    a.i("v_lshrrev_b32 v12, 1, v10")
    a.i(f"s_and_b32 s{S_T0}, s{S_LW}, 1")
    a.i(f"s_lshl_b32 s{S_T0}, s{S_T0}, 2")
    a.i(f"v_or_b32 v12, s{S_T0}, v12")
    a.i("v_xor_b32 v11, v11, v12")
    if rowkind == "nat":
        a.i(f"s_lshl_b32 s{S_T0}, s{S_LW}, 3")
        a.i(f"v_add_u32 v13, s{S_T0}, v10")
    else:
        a.i("v_lshrrev_b32 v13, 2, v10")
        a.i("v_lshlrev_b32 v13, 5, v13")
        a.i("v_and_b32 v12, 3, v10")
        a.i("v_add_u32 v13, v13, v12")
        a.i(f"s_lshl_b32 s{S_T0}, s{S_LW}, 2")
        a.i(f"v_add_u32 v13, s{S_T0}, v13")
    if extra_rows:
        a.i(f"v_add_u32 v13, {extra_rows}, v13")
    a.i(f"v_mul_u32_u24 v13, {pitch}, v13")
    a.i(f"v_lshl_add_u32 v{dst}, v11, 4, v13")

def loader_voff_T(a, dst, pitch):
    a.i("v_lshrrev_b32 v10, 3, v1")
    a.i("v_and_b32 v11, 7, v1")
    a.i("v_bfe_u32 v12, v10, 1, 1")
    a.i("v_lshlrev_b32 v12, 2, v12")
    a.i("v_xor_b32 v11, v11, v12")
    a.i(f"s_lshl_b32 s{S_T0}, s{S_LW}, 3")
    a.i(f"v_add_u32 v13, s{S_T0}, v10")
    a.i(f"v_mul_u32_u24 v13, {pitch}, v13")
    a.i(f"v_lshl_add_u32 v{dst}, v11, 4, v13")

def dma(a, voff, srdn, sbase, const, ldsconst):
    a.i(f"s_add_u32 m0, s{S_LDSW}, {ldsconst}")
    if const:
        a.i(f"s_add_u32 s{S_T1}, s{sbase}, {const}")
        so = S_T1
    else:
        so = sbase
        a.i("s_nop 0")
    a.i(f"buffer_load_dwordx4 v{voff}, {sr(srdn,4)}, s{so} offen lds")

def emit_loader(a, cfg, hook=None, pre_vm=0):
    NK, S, BUF, TM, TN = cfg["NK"], cfg["S"], cfg["BUF"], cfg["TM"], cfg["TN"]
    nA, nW = TM // 32, TN // 32
    PER = nA + nW
    def issue(kc):
        b = (kc % S) * BUF
        for j in range(nA):
            v, s, c = cfg["acts"](kc, j)
            dma(a, v, s, S_AB, c, b + j * 4096)
        for j in range(nW):
            v, s, c = cfg["wts"](kc, j)
            dma(a, v, s, S_WB, c, b + TM * 128 + j * 4096)
    for kc in range(min(S, NK)): issue(kc)
    for c in range(NK):
        upto = min(NK - 1, S - 1 if c == 0 else c - 2 + S)
        n = (upto - c) * PER
        assert n <= 63
        a.i(f"s_waitcnt vmcnt({n}) lgkmcnt(0)")
        a.i("s_barrier")
        if c >= 1 and c - 1 + S < NK: issue(c - 1 + S)
        if hook: hook(c, (c % S) * BUF)

def compute_addr_R(a, dst4, base_s=None, base_c=0):
    a.i("v_and_b32 v10, 31, v1")
    a.i("v_lshlrev_b32 v10, 7, v10")
    a.i("v_lshrrev_b32 v11, 5, v1")
    a.i("v_bfe_u32 v12, v1, 1, 3")
    a.i("v_xor_b32 v11, v11, v12")
    if base_s is not None: a.i(f"v_add_u32 v10, s{base_s}, v10")
    if base_c: a.i(f"v_add_u32 v10, {base_c}, v10")
    for s in range(4):
        a.i(f"v_xor_b32 v12, {2*s}, v11")
        a.i(f"v_lshl_add_u32 v{dst4+s}, v12, 4, v10")

def compute_addr_T0(a, dst):
    a.i("v_lshrrev_b32 v10, 5, v1")
    a.i("v_lshlrev_b32 v10, 3, v10")
    a.i("v_bfe_u32 v11, v1, 2, 2")
    a.i("v_add_u32 v10, v10, v11")
    a.i("v_lshlrev_b32 v10, 7, v10")
    a.i("v_bfe_u32 v11, v1, 3, 1")
    a.i("v_lshlrev_b32 v11, 6, v11")
    a.i("v_or_b32 v10, v10, v11")
    a.i("v_bfe_u32 v11, v1, 4, 1")
    a.i("v_lshlrev_b32 v11, 5, v11")
    a.i("v_or_b32 v10, v10, v11")
    a.i("v_bfe_u32 v11, v1, 1, 1")
    a.i("v_lshlrev_b32 v11, 4, v11")
    a.i("v_or_b32 v10, v10, v11")
    a.i("v_and_b32 v11, 1, v1")
    a.i("v_lshlrev_b32 v11, 3, v11")
    a.i(f"v_or_b32 v{dst}, v10, v11")

def emit_compute(a, cfg):
    NK, S, BUF = cfg["NK"], cfg["S"], cfg["BUF"]
    NTT, NTN, PD = cfg["NTT"], cfg["NTN"], cfg["PD"]
    VA, VW, ACC, FR = cfg["VA"], cfg["VW"], cfg["ACC"], cfg["FR"]
    NF = PD + 1
    wT = cfg["wfmt"] == "T"
    nreads = NTT + NTN * (2 if wT else 1)
    assert PD * nreads <= 15
    fsz = (NTT + NTN) * 4
    def fa(st, tt): return FR + (st % NF) * fsz + tt * 4
    def fw(st, nt): return FR + (st % NF) * fsz + NTT * 4 + nt * 4
    def acc(nt, tt): return ACC + (nt * NTT + tt) * 16
    def reads(st):
        s = st % 4
        for tt in range(NTT):
            a.i(f"ds_read_b128 {vr(fa(st,tt),4)}, v{VA+s} offset:{tt*4096}")
        for nt in range(NTN):
            if wT:
                a.i(f"ds_read_b64_tr_b16 {vr(fw(st,nt),2)}, v{VW+nt} offset:{s*2048}")
                a.i(f"ds_read_b64_tr_b16 {vr(fw(st,nt)+2,2)}, v{VW+nt} offset:{s*2048+512}")
            else:
                a.i(f"ds_read_b128 {vr(fw(st,nt),4)}, v{VW+s} offset:{cfg['woff'](nt)}")
    def advance(c):
        d = BUF if (c % S) else -(S - 1) * BUF
        lit = d & 0xffffffff
        regs = [VA + s for s in range(4)] + ([VW + n for n in range(NTN)] if wT else [VW + s for s in range(4)])
        for r in regs: a.i(f"v_add_u32 v{r}, {hex(lit)}, v{r}")
    steps = NK * 4
    a.i("s_barrier")
    for st in range(PD): reads(st)
    for j in range(steps):
        nxt = j + PD
        if nxt < steps:
            if nxt % 4 == 0:
                a.i("s_waitcnt lgkmcnt(0)")
                a.i("s_barrier")
                advance(nxt // 4)
            reads(nxt)
            a.i(f"s_waitcnt lgkmcnt({PD*nreads})")
        else:
            a.i(f"s_waitcnt lgkmcnt({(steps-1-j)*nreads})")
        for nt in range(NTN):
            for tt in range(NTT):
                d = vr(acc(nt, tt), 16)
                c = "0" if j == 0 else d
                if cfg["orient"] == "nt":
                    a.i(f"v_mfma_f32_32x32x16_bf16 {d}, {vr(fw(j,nt),4)}, {vr(fa(j,tt),4)}, {c}")
                else:
                    a.i(f"v_mfma_f32_32x32x16_bf16 {d}, {vr(fa(j,tt),4)}, {vr(fw(j,nt),4)}, {c}")

K1C = -2.0 * math.sqrt(2.0 / math.pi) * math.log2(math.e)
K2C = K1C * 0.044715
def gelu_consts(a, sk):
    a.i(f"s_mov_b32 s{sk}, {fhex(K1C)}"); a.i(f"s_mov_b32 s{sk+1}, {fhex(K1C)}")
    a.i(f"s_mov_b32 s{sk+2}, {fhex(K2C)}"); a.i(f"s_mov_b32 s{sk+3}, {fhex(K2C)}")
    a.i(f"s_mov_b32 s{sk+4}, 0xffff0000")

def gelu_words(a, words, tmp, sk, vk1):
    n = len(words)
    X = [tmp + 4*i for i in range(n)]
    T = [tmp + 4*i + 2 for i in range(n)]
    for i, w in enumerate(words):
        a.i(f"v_lshlrev_b32 v{X[i]}, 16, v{w}")
        a.i(f"v_and_b32 v{X[i]+1}, s{sk+4}, v{w}")
    for i in range(n): a.i(f"v_pk_mul_f32 {vr(T[i],2)}, {vr(X[i],2)}, {vr(X[i],2)}")
    for i in range(n): a.i(f"v_pk_fma_f32 {vr(T[i],2)}, {vr(T[i],2)}, {sr(sk+2,2)}, {vr(vk1,2)}")
    for i in range(n): a.i(f"v_pk_mul_f32 {vr(T[i],2)}, {vr(T[i],2)}, {vr(X[i],2)}")
    for i in range(n):
        a.i(f"v_exp_f32 v{T[i]}, v{T[i]}"); a.i(f"v_exp_f32 v{T[i]+1}, v{T[i]+1}")
    for i in range(n): a.i(f"v_pk_add_f32 {vr(T[i],2)}, {vr(T[i],2)}, 1.0 op_sel_hi:[1,0]")
    for i in range(n):
        a.i(f"v_rcp_f32 v{T[i]}, v{T[i]}"); a.i(f"v_rcp_f32 v{T[i]+1}, v{T[i]+1}")
    for i in range(n): a.i(f"v_pk_mul_f32 {vr(T[i],2)}, {vr(T[i],2)}, {vr(X[i],2)}")
    for i, w in enumerate(words): a.i(f"v_cvt_pk_bf16_f32 v{w}, v{T[i]}, v{T[i]+1}")
```

```python
import sys
sys.path.insert(0, "gen")
from gen import *
import importlib
def build(kernels, out):
    a = Asm()
    metas = []
    for k in kernels:
        mod = importlib.import_module(k)
        metas.append(getattr(mod, "gen_" + k)(a))
    hdr = open("cdna_kernels/" + NAME + ".s.ref").read().split("; Override launch")[0]
    txt = hdr
    for k, nwg, lds in metas:
        txt += f"; @launch kernel={k} grid=({nwg},1,1) block=(512,1,1) lds={lds}\n"
    txt += '.amdgcn_target "amdgcn-amd-amdhsa--gfx950"\n.text\n'
    txt += a.text()
    txt += '.section .rodata,"a"\n'
    for k, nwg, lds in metas: txt += descriptor(k)
    open(out, "w").write(txt)
    print("wrote", out, "instrs", a.count, "nops", a.nops, "bytes", len(txt))
if __name__ == "__main__":
    build(sys.argv[2:], sys.argv[1])
```

```python
import re

TRANS = ("v_exp_f32", "v_log_f32", "v_rcp_f32", "v_rsq_f32", "v_sqrt_f32", "v_sin_f32", "v_cos_f32")

def _expand(tok):
    tok = tok.strip()
    neg = tok.startswith("-")
    if neg: tok = tok[1:]
    if tok.startswith("abs(") or tok.startswith("|"):
        tok = tok.replace("abs(", "").replace(")", "").replace("|", "")
    m = re.fullmatch(r"([vsa])\[(\d+):(\d+)\]", tok)
    if m:
        return [f"{m.group(1)}{i}" for i in range(int(m.group(2)), int(m.group(3)) + 1)]
    m = re.fullmatch(r"([vsa])(\d+)", tok)
    if m: return [tok]
    if tok in ("vcc",): return ["vcc"]
    if tok in ("vcc_lo", "vcc_hi"): return ["vcc"]
    if tok in ("exec", "exec_lo", "exec_hi"): return ["exec"]
    if tok == "m0": return ["m0"]
    return []

class Ins:
    __slots__ = ("op", "ops", "kind", "w", "r", "text", "passes", "srcc", "dpp", "slots", "lds_dma", "store_data")

def parse(text):
    t = text.split(";")[0].split("//")[0].strip()
    op, _, rest = t.partition(" ")
    ins = Ins(); ins.op = op; ins.text = text; ins.passes = 0; ins.srcc = []; ins.dpp = False
    ins.slots = 1; ins.lds_dma = False; ins.store_data = []
    parts = [p.strip() for p in rest.split(",")] if rest else []
    mods = ""
    if parts:
        rest2 = re.sub(r"(\w+):\[([^\]]*)\]", lambda m: m.group(1) + ":{" + m.group(2).replace(",", ";") + "}" if m.group(1) not in ("v", "s", "a") else m.group(0), rest)
        parts = [p.strip() for p in rest2.split(",")]
        last = parts[-1].split()
        if last:
            parts[-1] = last[0]; mods = " ".join(last[1:])
    ins.ops = parts
    w, r = [], []
    base = re.sub(r"_(e32|e64|dpp|sdwa)$", "", op)
    if op.startswith("s_nop"):
        ins.kind = "nop"; ins.slots = int(parts[0], 0) + 1
    elif op.startswith("v_mfma"):
        ins.kind = "mfma"
        ins.passes = 8 if "32x32x16" in op else 4 if "16x16x32" in op else 16
        w = _expand(parts[0]); r = _expand(parts[1]) + _expand(parts[2]) + _expand(parts[3]); ins.srcc = _expand(parts[3])
    elif op.startswith("v_cmp"):
        ins.kind = "valu"; w = _expand(parts[0]); r = sum((_expand(p) for p in parts[1:]), [])
    elif base in ("v_readfirstlane_b32", "v_readlane_b32"):
        ins.kind = "valu"; w = _expand(parts[0]); r = sum((_expand(p) for p in parts[1:]), [])
    elif base == "v_writelane_b32":
        ins.kind = "valu"; w = _expand(parts[0]); r = sum((_expand(p) for p in parts[1:]), [])
    elif base.startswith("v_permlane") and "swap" in base:
        ins.kind = "valu"; w = _expand(parts[0]) + _expand(parts[1]); r = list(w)
    elif op.startswith("v_"):
        ins.kind = "valu"
        w = _expand(parts[0]); r = sum((_expand(p) for p in parts[1:]), [])
        if base in ("v_add_co_u32", "v_sub_co_u32", "v_addc_co_u32", "v_subb_co_u32"):
            w += _expand(parts[1]); r = sum((_expand(p) for p in parts[2:]), [])
        if base in ("v_fmac_f32", "v_dot2c_f32_bf16", "v_pk_fmac_f16"):
            r += _expand(parts[0])
        if base == "v_cndmask_b32" and len(parts) == 3:
            r += ["vcc"]
        if "_dpp" in op or "quad_perm" in mods or "row_" in mods:
            ins.dpp = True
    elif op.startswith("buffer_") or op.startswith("global_"):
        ins.kind = "vmem"
        if op.startswith("buffer_inv") or op.startswith("buffer_wbl2"):
            pass
        elif "lds" in mods.split() or op.startswith("global_load_lds"):
            ins.lds_dma = True
            r = sum((_expand(p) for p in parts), []) + ["m0"]
        elif "_load_" in op:
            w = _expand(parts[0]); r = sum((_expand(p) for p in parts[1:]), [])
        elif op.startswith("buffer_store") or op.startswith("buffer_atomic"):
            r = sum((_expand(p) for p in parts), [])
            ins.store_data = _expand(parts[0])
            if op.startswith("buffer_atomic") and "sc0" in mods.split(): w = _expand(parts[0])
        else:
            r = sum((_expand(p) for p in parts), [])
            ins.store_data = _expand(parts[1])
    elif op.startswith("ds_"):
        ins.kind = "ds"
        if op.startswith("ds_read") or op.startswith("ds_bpermute") or op.startswith("ds_swizzle") or op.startswith("ds_permute"):
            w = _expand(parts[0]); r = sum((_expand(p) for p in parts[1:]), [])
        else:
            r = sum((_expand(p) for p in parts), [])
    elif op.startswith("s_"):
        ins.kind = "salu"
        if op.startswith(("s_cmp", "s_cbranch", "s_branch", "s_waitcnt", "s_barrier", "s_endpgm", "s_setprio", "s_sleep", "s_bitcmp")):
            r = sum((_expand(p) for p in parts), [])
        elif op.startswith("s_getpc"):
            w = _expand(parts[0])
        elif op.startswith(("s_load", "s_buffer_load", "s_memtime", "s_memrealtime")):
            ins.kind = "smem"; w = _expand(parts[0]); r = sum((_expand(p) for p in parts[1:]), [])
        else:
            w = _expand(parts[0]); r = sum((_expand(p) for p in parts[1:]), [])
            if "saveexec" in op: w += ["exec"]; r += ["exec"]
    else:
        raise ValueError("unknown op: " + text)
    ins.w = set(w); ins.r = set(r)
    return ins

def is_sgpr(x): return x[0] == "s" or x == "vcc"
def is_vgpr(x): return x[0] in "va" and x != "vcc"

def need(prev, cur):
    n = 0
    base = re.sub(r"_(e32|e64|dpp|sdwa)$", "", cur.op)
    pbase = re.sub(r"_(e32|e64|dpp|sdwa)$", "", prev.op)
    if prev.kind == "valu":
        vw = {x for x in prev.w if is_vgpr(x)}
        sw = {x for x in prev.w if is_sgpr(x)}
        if cur.kind == "mfma" and vw & cur.r: n = max(n, 2)
        if cur.kind == "valu":
            if pbase in TRANS and base not in TRANS and vw & (cur.r | cur.w): n = max(n, 1)
            if pbase in TRANS and base in TRANS and vw & cur.r: n = max(n, 1)
            if base.startswith("v_permlane") and vw & cur.r: n = max(n, 2)
            if base in ("v_readfirstlane_b32", "v_readlane_b32") and vw & cur.r: n = max(n, 1)
            if cur.dpp and vw & cur.r: n = max(n, 2)
            if sw & cur.r: n = max(n, 2)
            if base in ("v_readlane_b32", "v_writelane_b32") and sw & cur.r: n = max(n, 4)
        if pbase.startswith("v_dot"):
            if cur.kind == "valu" and base != pbase and vw & (cur.r | cur.w): n = max(n, 3)
            if cur.kind == "valu" and base == pbase and vw & (cur.r - cur.w): n = max(n, 3)
            if cur.kind in ("vmem", "ds", "mfma") and vw & cur.r: n = max(n, 3)
        if cur.kind == "vmem" and sw & cur.r: n = max(n, 5)
        if cur.kind in ("salu", "smem") and sw & cur.r: n = max(n, 2)
        if "exec" in prev.w and cur.kind == "valu" and cur.dpp: n = max(n, 5)
        if "exec" in prev.w and cur.kind == "mfma": n = max(n, 4)
    if prev.kind == "mfma":
        p = prev.passes
        D = prev.w
        if cur.kind == "mfma":
            if D & set(cur.srcc):
                same = (set(cur.srcc) == D and cur.op == prev.op)
                if not same: n = max(n, p + 2)
            ab = cur.r - set(cur.srcc)
            abregs = set(_expand(cur.ops[1]) + _expand(cur.ops[2]))
            if D & abregs: n = max(n, p + 4)
            if D & cur.w and not (D & set(cur.srcc)): n = max(n, p + 2)
        elif cur.kind == "valu":
            if D & (cur.r | cur.w): n = max(n, p + 4)
            if set(prev.srcc) & cur.w: n = max(n, p - 1)
        elif cur.kind in ("vmem", "ds"):
            if D & (cur.r | cur.w): n = max(n, p + 4)
    if prev.kind == "salu" and "m0" in prev.w and cur.lds_dma: n = max(n, 1)
    if prev.kind == "salu" and "exec" in prev.w and cur.kind == "valu" and cur.dpp: n = max(n, 5)
    if prev.kind == "vmem" and len(prev.store_data) >= 3:
        sd = set(prev.store_data)
        if cur.kind == "valu" and sd & cur.w: n = max(n, 2)
        elif sd & cur.w: n = max(n, 1)
    return n

class Asm:
    def __init__(self):
        self.lines = []
        self.hist = []
        self.nops = 0
        self.count = 0
        self.end_hook = None
        self._in_hook = False
        self.store_suffix = ""
        self.endpgm_as = None
    def raw(self, text):
        self.lines.append(text)
    def comment(self, text):
        self.lines.append("    ; " + text)
    def label(self, name):
        self.lines.append(name + ":")
    def flush_hist(self):
        self.hist = []
    def i(self, text):
        for sub in text.split("\n"):
            sub = sub.strip()
            if not sub: continue
            if sub.endswith(":") and " " not in sub:
                self.label(sub[:-1]); continue
            if sub.startswith(";"):
                self.lines.append("    " + sub); continue
            if sub == "s_endpgm" and self.endpgm_as:
                sub = "s_branch " + self.endpgm_as
            if sub == "s_endpgm" and self.end_hook and not self._in_hook:
                self._in_hook = True; self.end_hook(self); self._in_hook = False
            if sub.startswith("buffer_store") and self.store_suffix and not self._in_hook: sub = sub + " " + self.store_suffix
            ins = parse(sub)
            dist = 0; req = 0
            for prev in reversed(self.hist):
                nd = need(prev, ins)
                if nd > dist: req = max(req, nd - dist)
                dist += prev.slots
                if dist > 24: break
            if req > 0:
                k = req
                while k > 0:
                    c = min(k, 16)
                    nop = parse(f"s_nop {c-1}")
                    self.lines.append(f"    s_nop {c-1}")
                    self.hist.append(nop); self.nops += c; k -= c
            self.lines.append("    " + sub)
            self.hist.append(ins)
            self.count += 1
            if len(self.hist) > 40: self.hist = self.hist[-40:]
    def text(self):
        return "\n".join(self.lines) + "\n"
```

```python
import sys, struct, math
sys.path.insert(0, "gen")
from asmlib import Asm

import os
KN = lambda k, d: int(os.environ.get(k, d))
NAME = "recurrent_scan__ssm_conv_s5__mixer_s_mlp__prompt"
def al(x, a=4096): return (x + a - 1) // a * a
WS = {}
_o = 0
for nm, sz in [("XN", 2048*1280), ("XNN", 2048*1280), ("HP", 2052*1280), ("U", 10*2048*256), ("AG", 2*32*640*8), ("X1", 2048*1280),
               ("PART", 10*2048*8), ("CS3", 1536*4), ("HC", 2048*2560), ("Z", 2048*3072), ("Y", 2048*2560)]:
    WS[nm] = (_o, sz); _o = al(_o + sz)
WS_TOTAL = _o

def fbits(x): return struct.unpack("<I", struct.pack("<f", x))[0]
def fhex(x): return "0x%08x" % fbits(x)

P_X, P_LRE, P_LIM, P_BRE, P_BIM, P_CRE, P_CIM, P_LDT = 8, 10, 12, 14, 16, 18, 20, 22
P_DSK, P_BX, P_W1, P_W2, P_W3, P_W4, P_OUT, P_DBG = 24, 26, 28, 30, 32, 34, 36, 38
P_WS = 40
SZ_ACT = 2048*1280
SZ_W640 = 640*1280

def srd(a, dst, ptr, size, off=0):
    if off:
        a.i(f"s_add_u32 s{dst}, s{ptr}, {off}")
        a.i(f"s_addc_u32 s{dst+1}, s{ptr+1}, 0")
    else:
        a.i(f"s_mov_b32 s{dst}, s{ptr}")
        a.i(f"s_mov_b32 s{dst+1}, s{ptr+1}")
    a.i(f"s_mov_b32 s{dst+2}, {size}")
    a.i(f"s_mov_b32 s{dst+3}, 0x20000")
def srd_ws(a, dst, nm):
    srd(a, dst, P_WS, WS[nm][1], WS[nm][0])

def prologue(a, kname, nwg):
    a.raw(f".globl {kname}\n.p2align 8\n.type {kname},@function\n{kname}:")
    a.flush_hist()
    a.i(f"s_cmp_ge_u32 s2, {nwg}")
    a.i(f"s_cbranch_scc1 {kname}_done")
    a.i("s_load_dwordx16 s[8:23], s[0:1], 0")
    a.i("s_load_dwordx16 s[24:39], s[0:1], 64")
    a.i("s_load_dwordx2 s[40:41], s[0:1], 128")
    a.i("v_and_b32 v1, 63, v0")
    a.i("v_lshrrev_b32 v2, 6, v0")
    a.i("v_readfirstlane_b32 s3, v2")
    if DBG["on"]:
        a.i("v_mov_b32 v255, 0")
        a.i("s_memrealtime s[98:99]"); a.i("s_waitcnt lgkmcnt(0)"); a.i("v_writelane_b32 v255, s98, 12")
        stamp(a, 0)
        a.i("s_getreg_b32 s98, hwreg(HW_REG_XCC_ID)"); a.i("v_writelane_b32 v255, s98, 16")
        a.i("s_getreg_b32 s98, hwreg(HW_REG_HW_ID)"); a.i("v_writelane_b32 v255, s98, 17")

def kernel_end(a, kname):
    a.label(f"{kname}_done")
    a.i("s_endpgm")

def descriptor(kname, vgpr=256, sgpr=102):
    vgpr = KVGPR.get(kname, vgpr)
    return (f".p2align 6\n.amdhsa_kernel {kname}\n  .amdhsa_next_free_vgpr {vgpr}\n  .amdhsa_next_free_sgpr {sgpr}\n"
            f"  .amdhsa_accum_offset {vgpr}\n  .amdhsa_group_segment_fixed_size 0\n  .amdhsa_kernarg_size 136\n"
            f"  .amdhsa_user_sgpr_count 2\n  .amdhsa_user_sgpr_kernarg_segment_ptr 1\n"
            f"  .amdhsa_system_sgpr_workgroup_id_x 1\n.end_amdhsa_kernel\n")

KVGPR = {}
KBLOCK = {}
STF = os.environ.get("STF", "")
def vr(b, n): return f"v[{b}:{b+n-1}]" if n > 1 else f"v{b}"
def sr(b, n): return f"s[{b}:{b+n-1}]"

def bf16r(a, dst, src):
    a.i(f"v_cvt_pk_bf16_f32 v{dst}, v{src}, v{src}")
    a.i(f"v_lshlrev_b32 v{dst}, 16, v{dst}")

S_LW = 4
S_LDSW = 5
S_AB = 6
S_WB = 7
S_T0 = 42
S_T1 = 43

def loader_voff_R(a, dst, pitch, rowkind="nat", extra_rows=0):
    a.i("v_lshrrev_b32 v10, 3, v1")
    a.i("v_and_b32 v11, 7, v1")
    a.i("v_lshrrev_b32 v12, 1, v10")
    a.i(f"s_and_b32 s{S_T0}, s{S_LW}, 1")
    a.i(f"s_lshl_b32 s{S_T0}, s{S_T0}, 2")
    a.i(f"v_or_b32 v12, s{S_T0}, v12")
    a.i("v_xor_b32 v11, v11, v12")
    if rowkind == "nat":
        a.i(f"s_lshl_b32 s{S_T0}, s{S_LW}, 3")
        a.i(f"v_add_u32 v13, s{S_T0}, v10")
    else:
        a.i("v_lshrrev_b32 v13, 2, v10")
        a.i("v_lshlrev_b32 v13, 5, v13")
        a.i("v_and_b32 v12, 3, v10")
        a.i("v_add_u32 v13, v13, v12")
        a.i(f"s_lshl_b32 s{S_T0}, s{S_LW}, 2")
        a.i(f"v_add_u32 v13, s{S_T0}, v13")
    if extra_rows:
        a.i(f"v_add_u32 v13, {extra_rows}, v13")
    a.i(f"v_mul_u32_u24 v13, {pitch}, v13")
    a.i(f"v_lshl_add_u32 v{dst}, v11, 4, v13")

def loader_voff_T(a, dst, pitch):
    a.i("v_lshrrev_b32 v10, 3, v1")
    a.i("v_and_b32 v11, 7, v1")
    a.i("v_bfe_u32 v12, v10, 1, 1")
    a.i("v_lshlrev_b32 v12, 2, v12")
    a.i("v_xor_b32 v11, v11, v12")
    a.i(f"s_lshl_b32 s{S_T0}, s{S_LW}, 3")
    a.i(f"v_add_u32 v13, s{S_T0}, v10")
    a.i(f"v_mul_u32_u24 v13, {pitch}, v13")
    a.i(f"v_lshl_add_u32 v{dst}, v11, 4, v13")

def dma(a, voff, srdn, sbase, const, ldsconst):
    a.i(f"s_add_u32 m0, s{S_LDSW}, {ldsconst}")
    if const:
        a.i(f"s_add_u32 s{S_T1}, s{sbase}, {const}")
        so = S_T1
    else:
        so = sbase
    if not KN("NODMA", 0): a.i(f"buffer_load_dwordx4 v{voff}, {sr(srdn,4)}, s{so} offen lds")

S_KC = 90
S_ACUR = 91
S_WCUR = 92
def emit_loader(a, cfg, tail=None, tail_at=None):
    NK, S, BUF, TM, TN = cfg["NK"], cfg["S"], cfg["BUF"], cfg["TM"], cfg["TN"]
    nld = cfg.get("nld", 4); LEAD = min(KN("LEAD_" + cfg.get("name", "x"), cfg.get("LEAD", 2)), S - 1); NKH = cfg.get("NKH", NK)
    nA, nW = TM // 8 // nld, TN // 8 // nld
    PER = nA + nW
    order = []
    def issue(i):
        b = (i % S) * BUF
        half = i // NKH
        if i > 0:
            a.i(f"s_add_u32 s{S_KC}, s{S_KC}, 1"); a.i(f"s_cmp_eq_u32 s{S_KC}, {NKH}"); a.i(f"s_cselect_b32 s{S_KC}, 0, s{S_KC}")
        a.i(f"s_mul_i32 s{S_ACUR}, s{S_KC}, {cfg['kA']}"); a.i(f"s_add_u32 s{S_ACUR}, s{S_ACUR}, s{S_AB}")
        a.i(f"s_mul_i32 s{S_WCUR}, s{S_KC}, {cfg['kW']}"); a.i(f"s_add_u32 s{S_WCUR}, s{S_WCUR}, s{S_WB}")
        if "pre" in cfg: cfg["pre"](i)
        for j in range(nA):
            v, s_, c = cfg["acts"](i, nld * j)
            dma(a, v, s_, S_ACUR, c, b + nld * j * 1024)
        for j in range(nW):
            v, s_, c = cfg["wts"](i, nld * j)
            dma(a, v, s_, S_WCUR, c, b + TM * 128 + nld * j * 1024)
        order.append((i, PER))
    slack = [0]
    def after(c):
        idx = [k for k, (ch, n) in enumerate(order) if ch == c][0]
        return sum(n for ch, n in order[idx + 1:])
    stamp(a, 1)
    LEAD0 = min(KN("LEAD0", cfg.get("LEAD0", 2)), LEAD)
    for i in range(min(LEAD0, NK)): issue(i)
    stamp(a, 2)
    nxt = min(LEAD0, NK)
    tail_done = False
    for c in range(NK):
        n = after(c)
        assert n <= 63, n
        a.i(f"s_waitcnt vmcnt({n})")
        a.i("s_barrier")
        if c == 0: stamp(a, 3)
        if c == 5: stamp(a, 4)
        lim = min(NK - 1, c - 1 + S if c >= 1 else S - 1)
        lim = min(lim, c + LEAD)
        budget = 2
        while nxt <= lim and budget > 0:
            issue(nxt); nxt += 1; budget -= 1
        if tail and not tail_done and tail_at is not None and c == tail_at:
            tail(); tail_done = True
            order.append(("x", 0)); slack[0] = 2
        if nxt == NK and not tail_done and tail:
            order.append(("x", tail())); tail_done = True
    assert nxt == NK
    stamp(a, 5)

def idle_barriers(a, n):
    for _ in range(n): a.i("s_barrier")

def compute_addr_R(a, dst4, base_s=None, base_c=0):
    a.i("v_and_b32 v10, 31, v1")
    a.i("v_lshlrev_b32 v10, 7, v10")
    a.i("v_lshrrev_b32 v11, 5, v1")
    a.i("v_bfe_u32 v12, v1, 1, 3")
    a.i("v_xor_b32 v11, v11, v12")
    if base_s is not None: a.i(f"v_add_u32 v10, s{base_s}, v10")
    if base_c: a.i(f"v_add_u32 v10, {base_c}, v10")
    for s in range(4):
        a.i(f"v_xor_b32 v12, {2*s}, v11")
        a.i(f"v_lshl_add_u32 v{dst4+s}, v12, 4, v10")

def compute_addr_T0(a, dst):
    a.i("v_lshrrev_b32 v10, 5, v1")
    a.i("v_lshlrev_b32 v10, 3, v10")
    a.i("v_bfe_u32 v11, v1, 2, 2")
    a.i("v_add_u32 v10, v10, v11")
    a.i("v_lshlrev_b32 v10, 7, v10")
    a.i("v_bfe_u32 v11, v1, 3, 1")
    a.i("v_lshlrev_b32 v11, 6, v11")
    a.i("v_or_b32 v10, v10, v11")
    a.i("v_bfe_u32 v11, v1, 4, 1")
    a.i("v_lshlrev_b32 v11, 5, v11")
    a.i("v_or_b32 v10, v10, v11")
    a.i("v_bfe_u32 v11, v1, 1, 1")
    a.i("v_lshlrev_b32 v11, 4, v11")
    a.i("v_or_b32 v10, v10, v11")
    a.i("v_and_b32 v11, 1, v1")
    a.i("v_lshlrev_b32 v11, 3, v11")
    a.i(f"v_or_b32 v{dst}, v10, v11")

def addr_groups(S, BUF, max_imm):
    per = 1
    while per < S and per * BUF + max_imm < 65536: per += 1
    return per, (S + per - 1) // per

def emit_compute(a, cfg):
    NK, S, BUF = cfg["NK"], cfg["S"], cfg["BUF"]
    NTT, NTN = cfg["NTT"], cfg["NTN"]
    VA, VW, ACC, FR = cfg["VA"], cfg["VW"], cfg["ACC"], cfg["FR"]
    PD = 2
    NF = PD + 1
    wT = cfg["wfmt"] == "T"
    nW = NTN if wT else 4
    nreads = NTT + NTN * (2 if wT else 1)
    fsz = (NTT + NTN) * 4
    max_imm = max((NTT - 1) * 4096, 3 * 2048 + 512 if wT else max(cfg["woff"](nt) for nt in range(NTN)))
    per, ngrp = addr_groups(S, BUF, max_imm)
    for g in range(1, ngrp):
        for r in range(4): a.i(f"v_add_u32 v{VA + 4*g + r}, {g*per*BUF}, v{VA + r}")
        for r in range(nW): a.i(f"v_add_u32 v{VW + nW*g + r}, {g*per*BUF}, v{VW + r}")
    def fa(st, tt): return FR + (st % NF) * fsz + tt * 4
    def fw(st, nt): return FR + (st % NF) * fsz + NTT * 4 + nt * 4
    def acc(nt, tt): return ACC + (nt * NTT + tt) * 16
    def reads(st):
        s = st % 4
        b = (st // 4) % S
        g, bo = b // per, (b % per) * BUF
        out = []
        wl, al_ = [], []
        for tt in range(NTT):
            al_.append(f"ds_read_b128 {vr(fa(st,tt),4)}, v{VA+4*g+s} offset:{bo + tt*4096}")
        for nt in range(NTN):
            if wT:
                wl.append(f"ds_read_b64_tr_b16 {vr(fw(st,nt),2)}, v{VW+nW*g+nt} offset:{bo + s*2048}")
                wl.append(f"ds_read_b64_tr_b16 {vr(fw(st,nt)+2,2)}, v{VW+nW*g+nt} offset:{bo + s*2048+512}")
            else:
                wl.append(f"ds_read_b128 {vr(fw(st,nt),4)}, v{VW+4*g+s} offset:{bo + cfg['woff'](nt)}")
        return al_ + wl
    steps = NK * 4
    if cfg.get("premid"): cfg["premid"]()
    stamp(a, 1)
    a.i("s_barrier")
    stamp(a, 3)
    for st in range(PD):
        for r in reads(st): a.i(r)
    mf_per_step = NTN * NTT
    rpg = KN("RPG", 2)
    for j in range(steps):
        nxt = j + PD
        pend = reads(nxt) if nxt < steps else []
        if KN("NOCOMP", 0):
            if nxt < steps and nxt % 4 == 0: a.i("s_barrier")
            continue
        if nxt < steps and nxt % 4 == 0:
            a.i("s_waitcnt lgkmcnt(0)")
            a.i("s_barrier")
        else:
            later = nreads if j + 1 < steps else 0
            a.i(f"s_waitcnt lgkmcnt({min(15, later)})")
        if j == steps - KN("MIDBACK", 12) and cfg.get("mid"): cfg["mid"]()
        hook = cfg.get("step_hook")
        extra = hook(j, [fa(j, tt) for tt in range(NTT)], [fw(j, nt) for nt in range(NTN)]) if hook else []
        k = 0
        for nt in range(NTN):
            for tt in range(NTT):
                d = vr(acc(nt, tt), 16)
                c = "0" if j == 0 else d
                if cfg["orient"] == "nt":
                    a.i(f"v_mfma_f32_32x32x16_bf16 {d}, {vr(fw(j,nt),4)}, {vr(fa(j,tt),4)}, {c}")
                else:
                    a.i(f"v_mfma_f32_32x32x16_bf16 {d}, {vr(fa(j,tt),4)}, {vr(fw(j,nt),4)}, {c}")
                k += 1
                n = rpg if k < mf_per_step else len(pend)
                n = max(n, -(-len(pend) // (mf_per_step - k + 1)))
                for _ in range(min(n, len(pend))): a.i(pend.pop(0))
                ne = -(-len(extra) // (mf_per_step - k + 1))
                for _ in range(min(ne, len(extra))): a.i(extra.pop(0))
    stamp(a, 5)

K1C = -2.0 * math.sqrt(2.0 / math.pi) * math.log2(math.e)
K2C = K1C * 0.044715
def gelu_consts(a, sk):
    a.i(f"s_mov_b32 s{sk}, {fhex(K1C)}"); a.i(f"s_mov_b32 s{sk+1}, {fhex(K1C)}")
    a.i(f"s_mov_b32 s{sk+2}, {fhex(K2C)}"); a.i(f"s_mov_b32 s{sk+3}, {fhex(K2C)}")
    a.i(f"s_mov_b32 s{sk+4}, 0xffff0000")

def gelu_words(a, words, tmp, sk, vk1):
    n = len(words)
    X = [tmp + 4*i for i in range(n)]
    T = [tmp + 4*i + 2 for i in range(n)]
    for i, w in enumerate(words):
        a.i(f"v_lshlrev_b32 v{X[i]}, 16, v{w}")
        a.i(f"v_and_b32 v{X[i]+1}, s{sk+4}, v{w}")
    for i in range(n): a.i(f"v_pk_mul_f32 {vr(T[i],2)}, {vr(X[i],2)}, {vr(X[i],2)}")
    for i in range(n): a.i(f"v_pk_fma_f32 {vr(T[i],2)}, {vr(T[i],2)}, {sr(sk+2,2)}, {vr(vk1,2)}")
    for i in range(n): a.i(f"v_pk_mul_f32 {vr(T[i],2)}, {vr(T[i],2)}, {vr(X[i],2)}")
    for i in range(n):
        a.i(f"v_exp_f32 v{T[i]}, v{T[i]}"); a.i(f"v_exp_f32 v{T[i]+1}, v{T[i]+1}")
    for i in range(n): a.i(f"v_pk_add_f32 {vr(T[i],2)}, {vr(T[i],2)}, 1.0 op_sel_hi:[1,0]")
    for i in range(n):
        a.i(f"v_rcp_f32 v{T[i]}, v{T[i]}"); a.i(f"v_rcp_f32 v{T[i]+1}, v{T[i]+1}")
    for i in range(n): a.i(f"v_pk_mul_f32 {vr(T[i],2)}, {vr(T[i],2)}, {vr(X[i],2)}")
    for i, w in enumerate(words): a.i(f"v_cvt_pk_bf16_f32 v{w}, v{T[i]}, v{T[i]+1}")


DBG = {"on": False, "kidx": 0}
WS_DBG = 128 << 20
def stamp(a, idx):
    if not DBG["on"]: return
    a.i("s_memtime s[98:99]"); a.i("s_waitcnt lgkmcnt(0)")
    a.i(f"v_writelane_b32 v255, s98, {idx}")
def dump_stamps(a):
    a.i("s_memtime s[98:99]"); a.i("s_waitcnt lgkmcnt(0)"); a.i("v_writelane_b32 v255, s98, 15")
    a.i("s_waitcnt vmcnt(0)")
    a.i("s_memtime s[98:99]"); a.i("s_waitcnt lgkmcnt(0)"); a.i("v_writelane_b32 v255, s98, 14")
    a.i("s_memrealtime s[98:99]"); a.i("s_waitcnt lgkmcnt(0)"); a.i("v_writelane_b32 v255, s98, 13")
    off = WS_DBG + DBG["kidx"] * 256 * 8 * 256
    a.i(f"s_add_u32 s84, s40, {off}"); a.i("s_addc_u32 s85, s41, 0"); a.i(f"s_mov_b32 s86, {256*8*256}"); a.i("s_mov_b32 s87, 0x20000")
    a.i("s_lshl_b32 s88, s2, 3"); a.i("s_add_u32 s88, s88, s3"); a.i("s_lshl_b32 s88, s88, 8")
    a.i("v_mbcnt_lo_u32_b32 v254, -1, 0"); a.i("v_mbcnt_hi_u32_b32 v254, -1, v254"); a.i("v_lshlrev_b32 v254, 2, v254")
    a.i("buffer_store_dword v255, v254, s[84:87], s88 offen")
```

```python
import sys
sys.path.insert(0, "gen")
from gen import *
import importlib
import gen as G
def build(kernels, out, dbg=False):
    a = Asm()
    metas = []
    G.DBG["on"] = dbg
    a.store_suffix = G.STF
    if dbg: a.end_hook = G.dump_stamps
    for ki, k in enumerate(kernels):
        G.DBG["kidx"] = ki
        mod = importlib.import_module(k)
        metas.append(getattr(mod, "gen_" + k)(a))
    hdr = open("cdna_kernels/" + NAME + ".s.ref").read().split("; Override launch")[0]
    txt = hdr
    for k, nwg, lds in metas:
        txt += f"; @launch kernel={k} grid=({nwg},1,1) block=({G.KBLOCK.get(k, 512)},1,1) lds={lds}\n"
    txt += '.amdgcn_target "amdgcn-amd-amdhsa--gfx950"\n.text\n'
    txt += a.text()
    txt += '.section .rodata,"a"\n'
    for k, nwg, lds in metas: txt += descriptor(k)
    open(out, "w").write(txt)
    print("wrote", out, "instrs", a.count, "nops", a.nops, "bytes", len(txt))
if __name__ == "__main__":
    args = sys.argv[2:]
    dbg = "dbg" in args
    build([x for x in args if x != "dbg"], sys.argv[1], dbg)
```

```python
import sys, struct, math
sys.path.insert(0, "gen")
from asmlib import Asm

import os
KN = lambda k, d: int(os.environ.get(k, d))
NAME = "recurrent_scan__ssm_conv_s5__mixer_s_mlp__prompt"
def al(x, a=4096): return (x + a - 1) // a * a
WS = {}
_o = 0
for nm, sz in [("XN", 2048*1280), ("XNN", 2048*1280), ("HP", 2052*1280), ("U", 10*2048*256), ("AG", 2*32*640*8), ("X1", 2048*1280),
               ("PART", 10*2048*8), ("CS3", 1536*4), ("HC", 2048*2560), ("Z", 2048*3072), ("Y", 2048*2560)]:
    WS[nm] = (_o, sz); _o = al(_o + sz)
WS_TOTAL = _o

def fbits(x): return struct.unpack("<I", struct.pack("<f", x))[0]
def fhex(x): return "0x%08x" % fbits(x)

P_X, P_LRE, P_LIM, P_BRE, P_BIM, P_CRE, P_CIM, P_LDT = 8, 10, 12, 14, 16, 18, 20, 22
P_DSK, P_BX, P_W1, P_W2, P_W3, P_W4, P_OUT, P_DBG = 24, 26, 28, 30, 32, 34, 36, 38
P_WS = 40
SZ_ACT = 2048*1280
SZ_W640 = 640*1280

def srd(a, dst, ptr, size, off=0):
    if off:
        a.i(f"s_add_u32 s{dst}, s{ptr}, {off}")
        a.i(f"s_addc_u32 s{dst+1}, s{ptr+1}, 0")
    else:
        a.i(f"s_mov_b32 s{dst}, s{ptr}")
        a.i(f"s_mov_b32 s{dst+1}, s{ptr+1}")
    a.i(f"s_mov_b32 s{dst+2}, {size}")
    a.i(f"s_mov_b32 s{dst+3}, 0x20000")
def srd_ws(a, dst, nm):
    srd(a, dst, P_WS, WS[nm][1], WS[nm][0])

def prologue(a, kname, nwg):
    a.raw(f".globl {kname}\n.p2align 8\n.type {kname},@function\n{kname}:")
    a.flush_hist()
    a.i(f"s_cmp_ge_u32 s2, {nwg}")
    a.i(f"s_cbranch_scc1 {kname}_done")
    a.i("s_load_dwordx16 s[8:23], s[0:1], 0")
    a.i("s_load_dwordx16 s[24:39], s[0:1], 64")
    a.i("s_load_dwordx2 s[40:41], s[0:1], 128")
    a.i("v_and_b32 v1, 63, v0")
    a.i("v_lshrrev_b32 v2, 6, v0")
    a.i("v_readfirstlane_b32 s3, v2")
    if DBG["on"]:
        a.i("v_mov_b32 v255, 0")
        a.i("s_memrealtime s[98:99]"); a.i("s_waitcnt lgkmcnt(0)"); a.i("v_writelane_b32 v255, s98, 12")
        stamp(a, 0)
        a.i("s_getreg_b32 s98, hwreg(HW_REG_XCC_ID)"); a.i("v_writelane_b32 v255, s98, 16")
        a.i("s_getreg_b32 s98, hwreg(HW_REG_HW_ID)"); a.i("v_writelane_b32 v255, s98, 17")

def code_prefetch(a, k_from, k_to_end, nbytes_max, vt=250, st=94, forward=False):
    if KN("NOCPF", 0): return 0
    lab = f"L_cpf{a.count}"
    a.i(f"s_getpc_b64 s[{st}:{st+1}]")
    a.label(lab)
    if forward:
        a.i(f"s_add_u32 s{st}, s{st}, ({k_from}-{lab})"); a.i(f"s_addc_u32 s{st+1}, s{st+1}, 0")
    else:
        a.i(f"s_sub_u32 s{st}, s{st}, ({lab}-{k_from})"); a.i(f"s_subb_u32 s{st+1}, s{st+1}, 0")
    a.i(f"v_lshlrev_b32 v{vt}, 7, v1")
    n = (nbytes_max + 8191) // 8192
    for i in range(n):
        if i: a.i(f"v_add_u32 v{vt}, 8192, v{vt}")
        a.i(f"v_min_u32 v{vt+1}, ({k_to_end}-{k_from}-4), v{vt}")
        a.i(f"global_load_dword v{vt+2+(i&1)}, v{vt+1}, s[{st}:{st+1}]")
    return n

def kernel_end(a, kname):
    a.label(f"{kname}_done")
    a.i("s_endpgm")
    a.label(f"{kname}_end")

def descriptor(kname, vgpr=256, sgpr=102):
    vgpr = KVGPR.get(kname, vgpr)
    return (f".p2align 6\n.amdhsa_kernel {kname}\n  .amdhsa_next_free_vgpr {vgpr}\n  .amdhsa_next_free_sgpr {sgpr}\n"
            f"  .amdhsa_accum_offset {vgpr}\n  .amdhsa_group_segment_fixed_size 0\n  .amdhsa_kernarg_size 136\n"
            f"  .amdhsa_user_sgpr_count 2\n  .amdhsa_user_sgpr_kernarg_segment_ptr 1\n"
            f"  .amdhsa_system_sgpr_workgroup_id_x 1\n.end_amdhsa_kernel\n")

CODE_MAX = {"k1": 24*1024, "k2": 24*1024, "k3": 32*1024, "k4": 16*1024}
KVGPR = {}
KBLOCK = {}
STF = os.environ.get("STF", "")
def vr(b, n): return f"v[{b}:{b+n-1}]" if n > 1 else f"v{b}"
def sr(b, n): return f"s[{b}:{b+n-1}]"

def bf16r(a, dst, src):
    a.i(f"v_cvt_pk_bf16_f32 v{dst}, v{src}, v{src}")
    a.i(f"v_lshlrev_b32 v{dst}, 16, v{dst}")

S_LW = 4
S_LDSW = 5
S_AB = 6
S_WB = 7
S_T0 = 42
S_T1 = 43

def loader_voff_R(a, dst, pitch, rowkind="nat", extra_rows=0):
    a.i("v_lshrrev_b32 v10, 3, v1")
    a.i("v_and_b32 v11, 7, v1")
    a.i("v_lshrrev_b32 v12, 1, v10")
    a.i(f"s_and_b32 s{S_T0}, s{S_LW}, 1")
    a.i(f"s_lshl_b32 s{S_T0}, s{S_T0}, 2")
    a.i(f"v_or_b32 v12, s{S_T0}, v12")
    a.i("v_xor_b32 v11, v11, v12")
    if rowkind == "nat":
        a.i(f"s_lshl_b32 s{S_T0}, s{S_LW}, 3")
        a.i(f"v_add_u32 v13, s{S_T0}, v10")
    else:
        a.i("v_lshrrev_b32 v13, 2, v10")
        a.i("v_lshlrev_b32 v13, 5, v13")
        a.i("v_and_b32 v12, 3, v10")
        a.i("v_add_u32 v13, v13, v12")
        a.i(f"s_lshl_b32 s{S_T0}, s{S_LW}, 2")
        a.i(f"v_add_u32 v13, s{S_T0}, v13")
    if extra_rows:
        a.i(f"v_add_u32 v13, {extra_rows}, v13")
    a.i(f"v_mul_u32_u24 v13, {pitch}, v13")
    a.i(f"v_lshl_add_u32 v{dst}, v11, 4, v13")

def loader_voff_T(a, dst, pitch):
    a.i("v_lshrrev_b32 v10, 3, v1")
    a.i("v_and_b32 v11, 7, v1")
    a.i("v_bfe_u32 v12, v10, 1, 1")
    a.i("v_lshlrev_b32 v12, 2, v12")
    a.i("v_xor_b32 v11, v11, v12")
    a.i(f"s_lshl_b32 s{S_T0}, s{S_LW}, 3")
    a.i(f"v_add_u32 v13, s{S_T0}, v10")
    a.i(f"v_mul_u32_u24 v13, {pitch}, v13")
    a.i(f"v_lshl_add_u32 v{dst}, v11, 4, v13")

def dma(a, voff, srdn, sbase, const, ldsconst):
    a.i(f"s_add_u32 m0, s{S_LDSW}, {ldsconst}")
    if const:
        a.i(f"s_add_u32 s{S_T1}, s{sbase}, {const}")
        so = S_T1
    else:
        so = sbase
    if not KN("NODMA", 0): a.i(f"buffer_load_dwordx4 v{voff}, {sr(srdn,4)}, s{so} offen lds")

S_KC = 90
S_ACUR = 91
S_WCUR = 92
def emit_loader(a, cfg, tail=None, tail_at=None):
    NK, S, BUF, TM, TN = cfg["NK"], cfg["S"], cfg["BUF"], cfg["TM"], cfg["TN"]
    nld = cfg.get("nld", 4); LEAD = min(KN("LEAD_" + cfg.get("name", "x"), cfg.get("LEAD", 2)), S - 1); NKH = cfg.get("NKH", NK)
    nA, nW = TM // 8 // nld, TN // 8 // nld
    PER = nA + nW
    order = []
    def issue(i):
        b = (i % S) * BUF
        half = i // NKH
        if i > 0:
            a.i(f"s_add_u32 s{S_KC}, s{S_KC}, 1"); a.i(f"s_cmp_eq_u32 s{S_KC}, {NKH}"); a.i(f"s_cselect_b32 s{S_KC}, 0, s{S_KC}")
        a.i(f"s_mul_i32 s{S_ACUR}, s{S_KC}, {cfg['kA']}"); a.i(f"s_add_u32 s{S_ACUR}, s{S_ACUR}, s{S_AB}")
        a.i(f"s_mul_i32 s{S_WCUR}, s{S_KC}, {cfg['kW']}"); a.i(f"s_add_u32 s{S_WCUR}, s{S_WCUR}, s{S_WB}")
        if "pre" in cfg: cfg["pre"](i)
        for j in range(nA):
            v, s_, c = cfg["acts"](i, nld * j)
            dma(a, v, s_, S_ACUR, c, b + nld * j * 1024)
        for j in range(nW):
            v, s_, c = cfg["wts"](i, nld * j)
            dma(a, v, s_, S_WCUR, c, b + TM * 128 + nld * j * 1024)
        order.append((i, PER))
    slack = [0]
    def after(c):
        idx = [k for k, (ch, n) in enumerate(order) if ch == c][0]
        return sum(n for ch, n in order[idx + 1:])
    stamp(a, 1)
    LEAD0 = min(KN("LEAD0", cfg.get("LEAD0", 2)), LEAD)
    for i in range(min(LEAD0, NK)): issue(i)
    stamp(a, 2)
    nxt = min(LEAD0, NK)
    tail_done = False
    for c in range(NK):
        n = after(c)
        assert n <= 63, n
        a.i(f"s_waitcnt vmcnt({n})")
        a.i("s_barrier")
        if c == 0: stamp(a, 3)
        if c == 5: stamp(a, 4)
        lim = min(NK - 1, c - 1 + S if c >= 1 else S - 1)
        lim = min(lim, c + LEAD)
        budget = 2
        while nxt <= lim and budget > 0:
            issue(nxt); nxt += 1; budget -= 1
        if tail and not tail_done and tail_at is not None and c == tail_at:
            tail(); tail_done = True
            order.append(("x", 0)); slack[0] = 2
        if nxt == NK and not tail_done and tail:
            order.append(("x", tail())); tail_done = True
    assert nxt == NK
    stamp(a, 5)

def idle_barriers(a, n):
    for _ in range(n): a.i("s_barrier")

def compute_addr_R(a, dst4, base_s=None, base_c=0):
    a.i("v_and_b32 v10, 31, v1")
    a.i("v_lshlrev_b32 v10, 7, v10")
    a.i("v_lshrrev_b32 v11, 5, v1")
    a.i("v_bfe_u32 v12, v1, 1, 3")
    a.i("v_xor_b32 v11, v11, v12")
    if base_s is not None: a.i(f"v_add_u32 v10, s{base_s}, v10")
    if base_c: a.i(f"v_add_u32 v10, {base_c}, v10")
    for s in range(4):
        a.i(f"v_xor_b32 v12, {2*s}, v11")
        a.i(f"v_lshl_add_u32 v{dst4+s}, v12, 4, v10")

def compute_addr_T0(a, dst):
    a.i("v_lshrrev_b32 v10, 5, v1")
    a.i("v_lshlrev_b32 v10, 3, v10")
    a.i("v_bfe_u32 v11, v1, 2, 2")
    a.i("v_add_u32 v10, v10, v11")
    a.i("v_lshlrev_b32 v10, 7, v10")
    a.i("v_bfe_u32 v11, v1, 3, 1")
    a.i("v_lshlrev_b32 v11, 6, v11")
    a.i("v_or_b32 v10, v10, v11")
    a.i("v_bfe_u32 v11, v1, 4, 1")
    a.i("v_lshlrev_b32 v11, 5, v11")
    a.i("v_or_b32 v10, v10, v11")
    a.i("v_bfe_u32 v11, v1, 1, 1")
    a.i("v_lshlrev_b32 v11, 4, v11")
    a.i("v_or_b32 v10, v10, v11")
    a.i("v_and_b32 v11, 1, v1")
    a.i("v_lshlrev_b32 v11, 3, v11")
    a.i(f"v_or_b32 v{dst}, v10, v11")

def addr_groups(S, BUF, max_imm):
    per = 1
    while per < S and per * BUF + max_imm < 65536: per += 1
    return per, (S + per - 1) // per

def emit_compute(a, cfg):
    NK, S, BUF = cfg["NK"], cfg["S"], cfg["BUF"]
    NTT, NTN = cfg["NTT"], cfg["NTN"]
    VA, VW, ACC, FR = cfg["VA"], cfg["VW"], cfg["ACC"], cfg["FR"]
    PD = 2
    NF = PD + 1
    wT = cfg["wfmt"] == "T"
    nW = NTN if wT else 4
    nreads = NTT + NTN * (2 if wT else 1)
    fsz = (NTT + NTN) * 4
    max_imm = max((NTT - 1) * 4096, 3 * 2048 + 512 if wT else max(cfg["woff"](nt) for nt in range(NTN)))
    per, ngrp = addr_groups(S, BUF, max_imm)
    for g in range(1, ngrp):
        for r in range(4): a.i(f"v_add_u32 v{VA + 4*g + r}, {g*per*BUF}, v{VA + r}")
        for r in range(nW): a.i(f"v_add_u32 v{VW + nW*g + r}, {g*per*BUF}, v{VW + r}")
    def fa(st, tt): return FR + (st % NF) * fsz + tt * 4
    def fw(st, nt): return FR + (st % NF) * fsz + NTT * 4 + nt * 4
    def acc(nt, tt): return ACC + (nt * NTT + tt) * 16
    def reads(st):
        s = st % 4
        b = (st // 4) % S
        g, bo = b // per, (b % per) * BUF
        out = []
        wl, al_ = [], []
        for tt in range(NTT):
            al_.append(f"ds_read_b128 {vr(fa(st,tt),4)}, v{VA+4*g+s} offset:{bo + tt*4096}")
        for nt in range(NTN):
            if wT:
                wl.append(f"ds_read_b64_tr_b16 {vr(fw(st,nt),2)}, v{VW+nW*g+nt} offset:{bo + s*2048}")
                wl.append(f"ds_read_b64_tr_b16 {vr(fw(st,nt)+2,2)}, v{VW+nW*g+nt} offset:{bo + s*2048+512}")
            else:
                wl.append(f"ds_read_b128 {vr(fw(st,nt),4)}, v{VW+4*g+s} offset:{bo + cfg['woff'](nt)}")
        return al_ + wl
    steps = NK * 4
    if cfg.get("premid"): cfg["premid"]()
    stamp(a, 1)
    a.i("s_barrier")
    stamp(a, 3)
    for st in range(PD):
        for r in reads(st): a.i(r)
    mf_per_step = NTN * NTT
    rpg = KN("RPG", 2)
    for j in range(steps):
        nxt = j + PD
        pend = reads(nxt) if nxt < steps else []
        if KN("NOCOMP", 0):
            if nxt < steps and nxt % 4 == 0: a.i("s_barrier")
            continue
        if nxt < steps and nxt % 4 == 0:
            a.i("s_waitcnt lgkmcnt(0)")
            a.i("s_barrier")
        else:
            later = nreads if j + 1 < steps else 0
            a.i(f"s_waitcnt lgkmcnt({min(15, later)})")
        if j == steps - KN("MIDBACK", 12) and cfg.get("mid"): cfg["mid"]()
        hook = cfg.get("step_hook")
        extra = hook(j, [fa(j, tt) for tt in range(NTT)], [fw(j, nt) for nt in range(NTN)]) if hook else []
        k = 0
        for nt in range(NTN):
            for tt in range(NTT):
                d = vr(acc(nt, tt), 16)
                c = "0" if j == 0 else d
                if cfg["orient"] == "nt":
                    a.i(f"v_mfma_f32_32x32x16_bf16 {d}, {vr(fw(j,nt),4)}, {vr(fa(j,tt),4)}, {c}")
                else:
                    a.i(f"v_mfma_f32_32x32x16_bf16 {d}, {vr(fa(j,tt),4)}, {vr(fw(j,nt),4)}, {c}")
                k += 1
                n = rpg if k < mf_per_step else len(pend)
                n = max(n, -(-len(pend) // (mf_per_step - k + 1)))
                for _ in range(min(n, len(pend))): a.i(pend.pop(0))
                ne = -(-len(extra) // (mf_per_step - k + 1))
                for _ in range(min(ne, len(extra))): a.i(extra.pop(0))
    stamp(a, 5)

K1C = -2.0 * math.sqrt(2.0 / math.pi) * math.log2(math.e)
K2C = K1C * 0.044715
def gelu_consts(a, sk):
    a.i(f"s_mov_b32 s{sk}, {fhex(K1C)}"); a.i(f"s_mov_b32 s{sk+1}, {fhex(K1C)}")
    a.i(f"s_mov_b32 s{sk+2}, {fhex(K2C)}"); a.i(f"s_mov_b32 s{sk+3}, {fhex(K2C)}")
    a.i(f"s_mov_b32 s{sk+4}, 0xffff0000")

def gelu_words(a, words, tmp, sk, vk1):
    n = len(words)
    X = [tmp + 4*i for i in range(n)]
    T = [tmp + 4*i + 2 for i in range(n)]
    for i, w in enumerate(words):
        a.i(f"v_lshlrev_b32 v{X[i]}, 16, v{w}")
        a.i(f"v_and_b32 v{X[i]+1}, s{sk+4}, v{w}")
    for i in range(n): a.i(f"v_pk_mul_f32 {vr(T[i],2)}, {vr(X[i],2)}, {vr(X[i],2)}")
    for i in range(n): a.i(f"v_pk_fma_f32 {vr(T[i],2)}, {vr(T[i],2)}, {sr(sk+2,2)}, {vr(vk1,2)}")
    for i in range(n): a.i(f"v_pk_mul_f32 {vr(T[i],2)}, {vr(T[i],2)}, {vr(X[i],2)}")
    for i in range(n):
        a.i(f"v_exp_f32 v{T[i]}, v{T[i]}"); a.i(f"v_exp_f32 v{T[i]+1}, v{T[i]+1}")
    for i in range(n): a.i(f"v_pk_add_f32 {vr(T[i],2)}, {vr(T[i],2)}, 1.0 op_sel_hi:[1,0]")
    for i in range(n):
        a.i(f"v_rcp_f32 v{T[i]}, v{T[i]}"); a.i(f"v_rcp_f32 v{T[i]+1}, v{T[i]+1}")
    for i in range(n): a.i(f"v_pk_mul_f32 {vr(T[i],2)}, {vr(T[i],2)}, {vr(X[i],2)}")
    for i, w in enumerate(words): a.i(f"v_cvt_pk_bf16_f32 v{w}, v{T[i]}, v{T[i]+1}")


DBG = {"on": False, "kidx": 0}
WS_DBG = 128 << 20
def stamp(a, idx):
    if not DBG["on"]: return
    a.i("s_memtime s[98:99]"); a.i("s_waitcnt lgkmcnt(0)")
    a.i(f"v_writelane_b32 v255, s98, {idx}")
def dump_stamps(a):
    a.i("s_memtime s[98:99]"); a.i("s_waitcnt lgkmcnt(0)"); a.i("v_writelane_b32 v255, s98, 15")
    a.i("s_waitcnt vmcnt(0)")
    a.i("s_memtime s[98:99]"); a.i("s_waitcnt lgkmcnt(0)"); a.i("v_writelane_b32 v255, s98, 14")
    a.i("s_memrealtime s[98:99]"); a.i("s_waitcnt lgkmcnt(0)"); a.i("v_writelane_b32 v255, s98, 13")
    off = WS_DBG + DBG["kidx"] * 256 * 8 * 256
    a.i(f"s_add_u32 s84, s40, {off}"); a.i("s_addc_u32 s85, s41, 0"); a.i(f"s_mov_b32 s86, {256*8*256}"); a.i("s_mov_b32 s87, 0x20000")
    a.i("s_lshl_b32 s88, s2, 3"); a.i("s_add_u32 s88, s88, s3"); a.i("s_lshl_b32 s88, s88, 8")
    a.i("v_mbcnt_lo_u32_b32 v254, -1, 0"); a.i("v_mbcnt_hi_u32_b32 v254, -1, v254"); a.i("v_lshlrev_b32 v254, 2, v254")
    a.i("buffer_store_dword v255, v254, s[84:87], s88 offen")
```

```python
import sys, struct, math
sys.path.insert(0, "gen")
from asmlib import Asm

import os
KN = lambda k, d: int(os.environ.get(k, d))
NAME = "recurrent_scan__ssm_conv_s5__mixer_s_mlp__prompt"
def al(x, a=4096): return (x + a - 1) // a * a
WS = {}
_o = 0
for nm, sz in [("XN", 2048*1280), ("XNN", 2048*1280), ("HP", 2052*1280), ("U", 10*2048*256), ("AG", 2*32*640*8), ("X1", 2048*1280),
               ("PART", 10*2048*8), ("CS3", 2*1536*4), ("HC", 2048*2560), ("Z", 2048*3072), ("Y", 2048*2560)]:
    WS[nm] = (_o, sz); _o = al(_o + sz)
WS_TOTAL = _o

def fbits(x): return struct.unpack("<I", struct.pack("<f", x))[0]
def fhex(x): return "0x%08x" % fbits(x)

P_X, P_LRE, P_LIM, P_BRE, P_BIM, P_CRE, P_CIM, P_LDT = 8, 10, 12, 14, 16, 18, 20, 22
P_DSK, P_BX, P_W1, P_W2, P_W3, P_W4, P_OUT, P_DBG = 24, 26, 28, 30, 32, 34, 36, 38
P_WS = 40
SZ_ACT = 2048*1280
SZ_W640 = 640*1280

def srd(a, dst, ptr, size, off=0):
    if off:
        a.i(f"s_add_u32 s{dst}, s{ptr}, {off}")
        a.i(f"s_addc_u32 s{dst+1}, s{ptr+1}, 0")
    else:
        a.i(f"s_mov_b32 s{dst}, s{ptr}")
        a.i(f"s_mov_b32 s{dst+1}, s{ptr+1}")
    a.i(f"s_mov_b32 s{dst+2}, {size}")
    a.i(f"s_mov_b32 s{dst+3}, 0x20000")
def srd_ws(a, dst, nm):
    srd(a, dst, P_WS, WS[nm][1], WS[nm][0])

def prologue(a, kname, nwg):
    a.raw(f".globl {kname}\n.p2align 8\n.type {kname},@function\n{kname}:")
    a.flush_hist()
    a.i(f"s_cmp_ge_u32 s2, {nwg}")
    a.i(f"s_cbranch_scc1 {kname}_done")
    a.i("s_load_dwordx16 s[8:23], s[0:1], 0")
    a.i("s_load_dwordx16 s[24:39], s[0:1], 64")
    a.i("s_load_dwordx2 s[40:41], s[0:1], 128")
    a.i("v_and_b32 v1, 63, v0")
    a.i("v_lshrrev_b32 v2, 6, v0")
    a.i("v_readfirstlane_b32 s3, v2")
    if DBG["on"]:
        a.i("v_mov_b32 v255, 0")
        a.i("s_memrealtime s[98:99]"); a.i("s_waitcnt lgkmcnt(0)"); a.i("v_writelane_b32 v255, s98, 12")
        stamp(a, 0)
        a.i("s_getreg_b32 s98, hwreg(HW_REG_XCC_ID)"); a.i("v_writelane_b32 v255, s98, 16")
        a.i("s_getreg_b32 s98, hwreg(HW_REG_HW_ID)"); a.i("v_writelane_b32 v255, s98, 17")

def code_prefetch(a, k_from, k_to_end, nbytes_max, vt=250, st=94, forward=False):
    if KN("NOCPF", 0): return 0
    lab = f"L_cpf{a.count}"
    a.i(f"s_getpc_b64 s[{st}:{st+1}]")
    a.label(lab)
    if forward:
        a.i(f"s_add_u32 s{st}, s{st}, ({k_from}-{lab})"); a.i(f"s_addc_u32 s{st+1}, s{st+1}, 0")
    else:
        a.i(f"s_sub_u32 s{st}, s{st}, ({lab}-{k_from})"); a.i(f"s_subb_u32 s{st+1}, s{st+1}, 0")
    a.i(f"v_lshlrev_b32 v{vt}, 7, v1")
    n = (nbytes_max + 8191) // 8192
    for i in range(n):
        if i: a.i(f"v_add_u32 v{vt}, 8192, v{vt}")
        a.i(f"v_min_u32 v{vt+1}, ({k_to_end}-{k_from}-4), v{vt}")
        a.i(f"global_load_dword v{vt+2+(i&1)}, v{vt+1}, s[{st}:{st+1}]")
    return n

def idle_prefetch(a, s_idx, nwaves, bufs):
    if KN("NOPF", 0): return
    a.i(f"s_lshl_b32 s60, s{s_idx}, 3"); a.i("s_add_u32 s60, s60, s3")
    a.i("v_lshlrev_b32 v3, 7, v1")
    k = 0
    for bi, (ptr, size) in enumerate(bufs):
        lines = size // 128
        per = -(-lines // nwaves)
        srd(a, 64, ptr, size)
        a.i(f"s_mul_i32 s61, s60, {per*128}")
        for i in range(-(-per // 64)):
            n = min(64, per - 64*i)
            if n < 64:
                a.i(f"v_cmp_gt_u32 vcc, {n}, v1"); a.i("s_and_saveexec_b64 s[62:63], vcc")
            a.i(f"s_add_u32 s68, s61, {i*8192}")
            a.i(f"buffer_load_dword v{8+(k&15)}, v3, s[64:67], s68 offen"); k += 1
            if n < 64: a.i("s_mov_b64 exec, s[62:63]")

def kernel_end(a, kname):
    a.label(f"{kname}_done")
    a.i("s_endpgm")
    a.label(f"{kname}_end")

def descriptor(kname, vgpr=256, sgpr=102):
    vgpr = KVGPR.get(kname, vgpr)
    return (f".p2align 6\n.amdhsa_kernel {kname}\n  .amdhsa_next_free_vgpr {vgpr}\n  .amdhsa_next_free_sgpr {sgpr}\n"
            f"  .amdhsa_accum_offset {vgpr}\n  .amdhsa_group_segment_fixed_size 0\n  .amdhsa_kernarg_size 136\n"
            f"  .amdhsa_user_sgpr_count 2\n  .amdhsa_user_sgpr_kernarg_segment_ptr 1\n"
            f"  .amdhsa_system_sgpr_workgroup_id_x 1\n.end_amdhsa_kernel\n")

CODE_MAX = {"k1": 24*1024, "k2": 24*1024, "k3": 32*1024, "k4": 16*1024}
KVGPR = {}
KBLOCK = {}
STF = os.environ.get("STF", "")
def vr(b, n): return f"v[{b}:{b+n-1}]" if n > 1 else f"v{b}"
def sr(b, n): return f"s[{b}:{b+n-1}]"

def bf16r(a, dst, src):
    a.i(f"v_cvt_pk_bf16_f32 v{dst}, v{src}, v{src}")
    a.i(f"v_lshlrev_b32 v{dst}, 16, v{dst}")

S_LW = 4
S_LDSW = 5
S_AB = 6
S_WB = 7
S_T0 = 42
S_T1 = 43

def loader_voff_R(a, dst, pitch, rowkind="nat", extra_rows=0):
    a.i("v_lshrrev_b32 v10, 3, v1")
    a.i("v_and_b32 v11, 7, v1")
    a.i("v_lshrrev_b32 v12, 1, v10")
    a.i(f"s_and_b32 s{S_T0}, s{S_LW}, 1")
    a.i(f"s_lshl_b32 s{S_T0}, s{S_T0}, 2")
    a.i(f"v_or_b32 v12, s{S_T0}, v12")
    a.i("v_xor_b32 v11, v11, v12")
    if rowkind == "nat":
        a.i(f"s_lshl_b32 s{S_T0}, s{S_LW}, 3")
        a.i(f"v_add_u32 v13, s{S_T0}, v10")
    else:
        a.i("v_lshrrev_b32 v13, 2, v10")
        a.i("v_lshlrev_b32 v13, 5, v13")
        a.i("v_and_b32 v12, 3, v10")
        a.i("v_add_u32 v13, v13, v12")
        a.i(f"s_lshl_b32 s{S_T0}, s{S_LW}, 2")
        a.i(f"v_add_u32 v13, s{S_T0}, v13")
    if extra_rows:
        a.i(f"v_add_u32 v13, {extra_rows}, v13")
    a.i(f"v_mul_u32_u24 v13, {pitch}, v13")
    a.i(f"v_lshl_add_u32 v{dst}, v11, 4, v13")

def loader_voff_T(a, dst, pitch):
    a.i("v_lshrrev_b32 v10, 3, v1")
    a.i("v_and_b32 v11, 7, v1")
    a.i("v_bfe_u32 v12, v10, 1, 1")
    a.i("v_lshlrev_b32 v12, 2, v12")
    a.i("v_xor_b32 v11, v11, v12")
    a.i(f"s_lshl_b32 s{S_T0}, s{S_LW}, 3")
    a.i(f"v_add_u32 v13, s{S_T0}, v10")
    a.i(f"v_mul_u32_u24 v13, {pitch}, v13")
    a.i(f"v_lshl_add_u32 v{dst}, v11, 4, v13")

def dma(a, voff, srdn, sbase, const, ldsconst):
    a.i(f"s_add_u32 m0, s{S_LDSW}, {ldsconst}")
    if const:
        a.i(f"s_add_u32 s{S_T1}, s{sbase}, {const}")
        so = S_T1
    else:
        so = sbase
    if not KN("NODMA", 0): a.i(f"buffer_load_dwordx4 v{voff}, {sr(srdn,4)}, s{so} offen lds")

S_KC = 90
S_ACUR = 91
S_WCUR = 92
def emit_loader(a, cfg, tail=None, tail_at=None):
    NK, S, BUF, TM, TN = cfg["NK"], cfg["S"], cfg["BUF"], cfg["TM"], cfg["TN"]
    nld = cfg.get("nld", 4); LEAD = min(KN("LEAD_" + cfg.get("name", "x"), cfg.get("LEAD", 2)), S - (2 if cfg.get("lazy", False) else 1)); NKH = cfg.get("NKH", NK)
    nA, nW = TM // 8 // nld, TN // 8 // nld
    PER = nA + nW
    order = []
    def issue(i):
        b = (i % S) * BUF
        half = i // NKH
        if i > 0:
            a.i(f"s_add_u32 s{S_KC}, s{S_KC}, 1"); a.i(f"s_cmp_eq_u32 s{S_KC}, {NKH}"); a.i(f"s_cselect_b32 s{S_KC}, 0, s{S_KC}")
        a.i(f"s_mul_i32 s{S_ACUR}, s{S_KC}, {cfg['kA']}"); a.i(f"s_add_u32 s{S_ACUR}, s{S_ACUR}, s{S_AB}")
        a.i(f"s_mul_i32 s{S_WCUR}, s{S_KC}, {cfg['kW']}"); a.i(f"s_add_u32 s{S_WCUR}, s{S_WCUR}, s{S_WB}")
        if "pre" in cfg: cfg["pre"](i)
        for j in range(nA):
            v, s_, c = cfg["acts"](i, nld * j)
            dma(a, v, s_, S_ACUR, c, b + nld * j * 1024)
        for j in range(nW):
            v, s_, c = cfg["wts"](i, nld * j)
            dma(a, v, s_, S_WCUR, c, b + TM * 128 + nld * j * 1024)
        order.append((i, PER))
    slack = [0]
    def after(c):
        idx = [k for k, (ch, n) in enumerate(order) if ch == c][0]
        return sum(n for ch, n in order[idx + 1:])
    stamp(a, 1)
    LEAD0 = min(KN("LEAD0", cfg.get("LEAD0", 2)), LEAD)
    for i in range(min(LEAD0, NK)): issue(i)
    stamp(a, 2)
    nxt = min(LEAD0, NK)
    tail_done = False
    for c in range(NK):
        n = after(c)
        assert n <= 63, n
        a.i(f"s_waitcnt vmcnt({n})")
        a.i("s_barrier")
        if c == 0: stamp(a, 3)
        if c == 5: stamp(a, 4)
        back = 2 if cfg.get("lazy", False) else 1
        lim = min(NK - 1, max(S - 1, c - back + S))
        lim = min(lim, c + LEAD)
        budget = 2
        while nxt <= lim and budget > 0:
            issue(nxt); nxt += 1; budget -= 1
        if tail and not tail_done and tail_at is not None and c == tail_at:
            tail(); tail_done = True
            order.append(("x", 0)); slack[0] = 2
        if nxt == NK and not tail_done and tail:
            order.append(("x", tail())); tail_done = True
    assert nxt == NK
    stamp(a, 5)

def idle_barriers(a, n):
    for _ in range(n): a.i("s_barrier")

def compute_addr_R(a, dst4, base_s=None, base_c=0):
    a.i("v_and_b32 v10, 31, v1")
    a.i("v_lshlrev_b32 v10, 7, v10")
    a.i("v_lshrrev_b32 v11, 5, v1")
    a.i("v_bfe_u32 v12, v1, 1, 3")
    a.i("v_xor_b32 v11, v11, v12")
    if base_s is not None: a.i(f"v_add_u32 v10, s{base_s}, v10")
    if base_c: a.i(f"v_add_u32 v10, {base_c}, v10")
    for s in range(4):
        a.i(f"v_xor_b32 v12, {2*s}, v11")
        a.i(f"v_lshl_add_u32 v{dst4+s}, v12, 4, v10")

def compute_addr_T0(a, dst):
    a.i("v_lshrrev_b32 v10, 5, v1")
    a.i("v_lshlrev_b32 v10, 3, v10")
    a.i("v_bfe_u32 v11, v1, 2, 2")
    a.i("v_add_u32 v10, v10, v11")
    a.i("v_lshlrev_b32 v10, 7, v10")
    a.i("v_bfe_u32 v11, v1, 3, 1")
    a.i("v_lshlrev_b32 v11, 6, v11")
    a.i("v_or_b32 v10, v10, v11")
    a.i("v_bfe_u32 v11, v1, 4, 1")
    a.i("v_lshlrev_b32 v11, 5, v11")
    a.i("v_or_b32 v10, v10, v11")
    a.i("v_bfe_u32 v11, v1, 1, 1")
    a.i("v_lshlrev_b32 v11, 4, v11")
    a.i("v_or_b32 v10, v10, v11")
    a.i("v_and_b32 v11, 1, v1")
    a.i("v_lshlrev_b32 v11, 3, v11")
    a.i(f"v_or_b32 v{dst}, v10, v11")

def addr_groups(S, BUF, max_imm):
    per = 1
    while per < S and per * BUF + max_imm < 65536: per += 1
    return per, (S + per - 1) // per

def emit_compute(a, cfg):
    NK, S, BUF = cfg["NK"], cfg["S"], cfg["BUF"]
    NTT, NTN = cfg["NTT"], cfg["NTN"]
    VA, VW, ACC, FR = cfg["VA"], cfg["VW"], cfg["ACC"], cfg["FR"]
    PD = KN("PD_" + cfg.get("name", "x"), cfg.get("PD", 2))
    lazy = cfg.get("lazy", False)
    assert PD <= 4
    NF = PD + 1
    wT = cfg["wfmt"] == "T"
    nW = NTN if wT else 4
    nreads = NTT + NTN * (2 if wT else 1)
    fsz = (NTT + NTN) * 4
    max_imm = max((NTT - 1) * 4096, 3 * 2048 + 512 if wT else max(cfg["woff"](nt) for nt in range(NTN)))
    per, ngrp = addr_groups(S, BUF, max_imm)
    for g in range(1, ngrp):
        for r in range(4): a.i(f"v_add_u32 v{VA + 4*g + r}, {g*per*BUF}, v{VA + r}")
        for r in range(nW): a.i(f"v_add_u32 v{VW + nW*g + r}, {g*per*BUF}, v{VW + r}")
    def fa(st, tt): return FR + (st % NF) * fsz + tt * 4
    def fw(st, nt): return FR + (st % NF) * fsz + NTT * 4 + nt * 4
    def acc(nt, tt): return ACC + (nt * NTT + tt) * 16
    def reads(st):
        s = st % 4
        b = (st // 4) % S
        g, bo = b // per, (b % per) * BUF
        out = []
        wl, al_ = [], []
        for tt in range(NTT):
            al_.append(f"ds_read_b128 {vr(fa(st,tt),4)}, v{VA+4*g+s} offset:{bo + tt*4096}")
        for nt in range(NTN):
            if wT:
                wl.append(f"ds_read_b64_tr_b16 {vr(fw(st,nt),2)}, v{VW+nW*g+nt} offset:{bo + s*2048}")
                wl.append(f"ds_read_b64_tr_b16 {vr(fw(st,nt)+2,2)}, v{VW+nW*g+nt} offset:{bo + s*2048+512}")
            else:
                wl.append(f"ds_read_b128 {vr(fw(st,nt),4)}, v{VW+4*g+s} offset:{bo + cfg['woff'](nt)}")
        return al_ + wl
    steps = NK * 4
    if cfg.get("premid"): cfg["premid"]()
    stamp(a, 1)
    a.i("s_barrier")
    stamp(a, 3)
    for st in range(PD):
        for r in reads(st): a.i(r)
    mf_per_step = NTN * NTT
    rpg = KN("RPG", 2)
    for j in range(steps):
        nxt = j + PD
        pend = reads(nxt) if nxt < steps else []
        if KN("NOCOMP", 0):
            if nxt < steps and nxt % 4 == 0: a.i("s_barrier")
            continue
        later = nreads * min(PD - 1, steps - 1 - j)
        if nxt < steps and nxt % 4 == 0:
            a.i(f"s_waitcnt lgkmcnt({min(15, later) if lazy else 0})")
            a.i("s_barrier")
        else:
            a.i(f"s_waitcnt lgkmcnt({min(15, later)})")
        if j == steps - KN("MIDBACK", 12) and cfg.get("mid"): cfg["mid"]()
        hook = cfg.get("step_hook")
        extra = hook(j, [fa(j, tt) for tt in range(NTT)], [fw(j, nt) for nt in range(NTN)]) if hook else []
        k = 0
        for nt in range(NTN):
            for tt in range(NTT):
                d = vr(acc(nt, tt), 16)
                c = "0" if j == 0 else d
                if cfg["orient"] == "nt":
                    a.i(f"v_mfma_f32_32x32x16_bf16 {d}, {vr(fw(j,nt),4)}, {vr(fa(j,tt),4)}, {c}")
                else:
                    a.i(f"v_mfma_f32_32x32x16_bf16 {d}, {vr(fa(j,tt),4)}, {vr(fw(j,nt),4)}, {c}")
                k += 1
                n = rpg if k < mf_per_step else len(pend)
                n = max(n, -(-len(pend) // (mf_per_step - k + 1)))
                for _ in range(min(n, len(pend))): a.i(pend.pop(0))
                ne = -(-len(extra) // (mf_per_step - k + 1))
                for _ in range(min(ne, len(extra))): a.i(extra.pop(0))
    stamp(a, 5)

K1C = -2.0 * math.sqrt(2.0 / math.pi) * math.log2(math.e)
K2C = K1C * 0.044715
def gelu_consts(a, sk):
    a.i(f"s_mov_b32 s{sk}, {fhex(K1C)}"); a.i(f"s_mov_b32 s{sk+1}, {fhex(K1C)}")
    a.i(f"s_mov_b32 s{sk+2}, {fhex(K2C)}"); a.i(f"s_mov_b32 s{sk+3}, {fhex(K2C)}")
    a.i(f"s_mov_b32 s{sk+4}, 0xffff0000")

def gelu_words(a, words, tmp, sk, vk1):
    n = len(words)
    X = [tmp + 4*i for i in range(n)]
    T = [tmp + 4*i + 2 for i in range(n)]
    for i, w in enumerate(words):
        a.i(f"v_lshlrev_b32 v{X[i]}, 16, v{w}")
        a.i(f"v_and_b32 v{X[i]+1}, s{sk+4}, v{w}")
    for i in range(n): a.i(f"v_pk_mul_f32 {vr(T[i],2)}, {vr(X[i],2)}, {vr(X[i],2)}")
    for i in range(n): a.i(f"v_pk_fma_f32 {vr(T[i],2)}, {vr(T[i],2)}, {sr(sk+2,2)}, {vr(vk1,2)}")
    for i in range(n): a.i(f"v_pk_mul_f32 {vr(T[i],2)}, {vr(T[i],2)}, {vr(X[i],2)}")
    for i in range(n):
        a.i(f"v_exp_f32 v{T[i]}, v{T[i]}"); a.i(f"v_exp_f32 v{T[i]+1}, v{T[i]+1}")
    for i in range(n): a.i(f"v_pk_add_f32 {vr(T[i],2)}, {vr(T[i],2)}, 1.0 op_sel_hi:[1,0]")
    for i in range(n):
        a.i(f"v_rcp_f32 v{T[i]}, v{T[i]}"); a.i(f"v_rcp_f32 v{T[i]+1}, v{T[i]+1}")
    for i in range(n): a.i(f"v_pk_mul_f32 {vr(T[i],2)}, {vr(T[i],2)}, {vr(X[i],2)}")
    for i, w in enumerate(words): a.i(f"v_cvt_pk_bf16_f32 v{w}, v{T[i]}, v{T[i]+1}")


DBG = {"on": False, "kidx": 0}
WS_DBG = 128 << 20
def stamp(a, idx):
    if not DBG["on"]: return
    a.i("s_memtime s[98:99]"); a.i("s_waitcnt lgkmcnt(0)")
    a.i(f"v_writelane_b32 v255, s98, {idx}")
def dump_stamps(a):
    a.i("s_memtime s[98:99]"); a.i("s_waitcnt lgkmcnt(0)"); a.i("v_writelane_b32 v255, s98, 15")
    a.i("s_waitcnt vmcnt(0)")
    a.i("s_memtime s[98:99]"); a.i("s_waitcnt lgkmcnt(0)"); a.i("v_writelane_b32 v255, s98, 14")
    a.i("s_memrealtime s[98:99]"); a.i("s_waitcnt lgkmcnt(0)"); a.i("v_writelane_b32 v255, s98, 13")
    off = WS_DBG + DBG["kidx"] * 256 * 8 * 256
    a.i(f"s_add_u32 s84, s40, {off}"); a.i("s_addc_u32 s85, s41, 0"); a.i(f"s_mov_b32 s86, {256*8*256}"); a.i("s_mov_b32 s87, 0x20000")
    a.i("s_lshl_b32 s88, s2, 3"); a.i("s_add_u32 s88, s88, s3"); a.i("s_lshl_b32 s88, s88, 8")
    a.i("v_mbcnt_lo_u32_b32 v254, -1, 0"); a.i("v_mbcnt_hi_u32_b32 v254, -1, v254"); a.i("v_lshlrev_b32 v254, 2, v254")
    a.i("buffer_store_dword v255, v254, s[84:87], s88 offen")
```

```python
import sys, struct, math
sys.path.insert(0, "gen")
from asmlib import Asm

import os
KN = lambda k, d: int(os.environ.get(k, d))
NAME = "recurrent_scan__ssm_conv_s5__mixer_s_mlp__prompt"
def al(x, a=4096): return (x + a - 1) // a * a
WS = {}
_o = 0
for nm, sz in [("XN", 2048*1280), ("XNN", 2048*1280), ("HP", 2052*1280), ("U", 10*2048*256), ("AG", 2*32*640*8), ("X1", 2048*1280),
               ("PART", 10*2048*8), ("CS3", 2*1536*4), ("HC", 2048*2560), ("CP", 640*2560), ("Z", 2048*3072), ("Y", 2048*2560), ("FLG", 128*128)]:
    WS[nm] = (_o, sz); _o = al(_o + sz)
WS_TOTAL = _o

def fbits(x): return struct.unpack("<I", struct.pack("<f", x))[0]
def fhex(x): return "0x%08x" % fbits(x)

P_X, P_LRE, P_LIM, P_BRE, P_BIM, P_CRE, P_CIM, P_LDT = 8, 10, 12, 14, 16, 18, 20, 22
P_DSK, P_BX, P_W1, P_W2, P_W3, P_W4, P_OUT, P_DBG = 24, 26, 28, 30, 32, 34, 36, 38
P_WS = 40
SZ_ACT = 2048*1280
SZ_W640 = 640*1280

def srd(a, dst, ptr, size, off=0):
    if off:
        a.i(f"s_add_u32 s{dst}, s{ptr}, {off}")
        a.i(f"s_addc_u32 s{dst+1}, s{ptr+1}, 0")
    else:
        a.i(f"s_mov_b32 s{dst}, s{ptr}")
        a.i(f"s_mov_b32 s{dst+1}, s{ptr+1}")
    a.i(f"s_mov_b32 s{dst+2}, {size}")
    a.i(f"s_mov_b32 s{dst+3}, 0x20000")
def srd_ws(a, dst, nm):
    srd(a, dst, P_WS, WS[nm][1], WS[nm][0])

def prologue(a, kname, nwg):
    a.raw(f".globl {kname}\n.p2align 8\n.type {kname},@function\n{kname}:")
    a.flush_hist()
    a.i(f"s_cmp_ge_u32 s2, {nwg}")
    a.i(f"s_cbranch_scc1 {kname}_done")
    a.i("s_load_dwordx16 s[8:23], s[0:1], 0")
    a.i("s_load_dwordx16 s[24:39], s[0:1], 64")
    a.i("s_load_dwordx2 s[40:41], s[0:1], 128")
    a.i("v_and_b32 v1, 63, v0")
    a.i("v_lshrrev_b32 v2, 6, v0")
    a.i("v_readfirstlane_b32 s3, v2")
    if DBG["on"]:
        a.i("v_mov_b32 v255, 0")
        mega = kname.startswith("recurrent")
        a.i("s_memrealtime s[98:99]"); a.i("s_waitcnt lgkmcnt(0)"); a.i(f"v_writelane_b32 v255, s98, {56 if mega else 12}")
        stamp(a, 0)

def code_prefetch(a, k_from, k_to_end, nbytes_max, vt=250, st=94, forward=False):
    if KN("NOCPF", 0): return 0
    lab = f"L_cpf{a.count}"
    a.i(f"s_getpc_b64 s[{st}:{st+1}]")
    a.label(lab)
    if forward:
        a.i(f"s_add_u32 s{st}, s{st}, ({k_from}-{lab})"); a.i(f"s_addc_u32 s{st+1}, s{st+1}, 0")
    else:
        a.i(f"s_sub_u32 s{st}, s{st}, ({lab}-{k_from})"); a.i(f"s_subb_u32 s{st+1}, s{st+1}, 0")
    a.i(f"v_lshlrev_b32 v{vt}, 7, v1")
    n = (nbytes_max + 8191) // 8192
    for i in range(n):
        if i: a.i(f"v_add_u32 v{vt}, 8192, v{vt}")
        a.i(f"v_min_u32 v{vt+1}, ({k_to_end}-{k_from}-4), v{vt}")
        a.i(f"global_load_dword v{vt+2+(i&1)}, v{vt+1}, s[{st}:{st+1}]")
    return n

def idle_prefetch(a, s_idx, nwaves, bufs):
    if KN("NOPF", 0): return
    a.i(f"s_lshl_b32 s60, s{s_idx}, 3"); a.i("s_add_u32 s60, s60, s3")
    a.i("v_lshlrev_b32 v3, 7, v1")
    k = 0
    for bi, (ptr, size) in enumerate(bufs):
        lines = size // 128
        per = -(-lines // nwaves)
        srd(a, 64, ptr, size)
        a.i(f"s_mul_i32 s61, s60, {per*128}")
        for i in range(-(-per // 64)):
            n = min(64, per - 64*i)
            if n < 64:
                a.i(f"v_cmp_gt_u32 vcc, {n}, v1"); a.i("s_and_saveexec_b64 s[62:63], vcc")
            a.i(f"s_add_u32 s68, s61, {i*8192}")
            a.i(f"buffer_load_dword v{8+(k&15)}, v3, s[64:67], s68 offen"); k += 1
            if n < 64: a.i("s_mov_b64 exec, s[62:63]")

def kernel_end(a, kname):
    a.label(f"{kname}_done")
    a.i("s_endpgm")
    a.label(f"{kname}_end")

def descriptor(kname, vgpr=256, sgpr=102):
    vgpr = KVGPR.get(kname, vgpr)
    return (f".p2align 6\n.amdhsa_kernel {kname}\n  .amdhsa_next_free_vgpr {vgpr}\n  .amdhsa_next_free_sgpr {sgpr}\n"
            f"  .amdhsa_accum_offset {vgpr}\n  .amdhsa_group_segment_fixed_size 0\n  .amdhsa_kernarg_size 136\n"
            f"  .amdhsa_user_sgpr_count 2\n  .amdhsa_user_sgpr_kernarg_segment_ptr 1\n"
            f"  .amdhsa_system_sgpr_workgroup_id_x 1\n.end_amdhsa_kernel\n")

CODE_MAX = {"k1": 24*1024, "k2": 24*1024, "k3": 32*1024, "k4": 16*1024}
KVGPR = {}
KBLOCK = {}
STF = os.environ.get("STF", "")
def vr(b, n): return f"v[{b}:{b+n-1}]" if n > 1 else f"v{b}"
def sr(b, n): return f"s[{b}:{b+n-1}]"

def bf16r(a, dst, src):
    a.i(f"v_cvt_pk_bf16_f32 v{dst}, v{src}, v{src}")
    a.i(f"v_lshlrev_b32 v{dst}, 16, v{dst}")

S_LW = 4
S_LDSW = 5
S_AB = 6
S_WB = 7
S_T0 = 42
S_T1 = 43

def loader_voff_R(a, dst, pitch, rowkind="nat", extra_rows=0):
    a.i("v_lshrrev_b32 v10, 3, v1")
    a.i("v_and_b32 v11, 7, v1")
    a.i("v_lshrrev_b32 v12, 1, v10")
    a.i(f"s_and_b32 s{S_T0}, s{S_LW}, 1")
    a.i(f"s_lshl_b32 s{S_T0}, s{S_T0}, 2")
    a.i(f"v_or_b32 v12, s{S_T0}, v12")
    a.i("v_xor_b32 v11, v11, v12")
    if rowkind == "nat":
        a.i(f"s_lshl_b32 s{S_T0}, s{S_LW}, 3")
        a.i(f"v_add_u32 v13, s{S_T0}, v10")
    else:
        a.i("v_lshrrev_b32 v13, 2, v10")
        a.i("v_lshlrev_b32 v13, 5, v13")
        a.i("v_and_b32 v12, 3, v10")
        a.i("v_add_u32 v13, v13, v12")
        a.i(f"s_lshl_b32 s{S_T0}, s{S_LW}, 2")
        a.i(f"v_add_u32 v13, s{S_T0}, v13")
    if extra_rows:
        a.i(f"v_add_u32 v13, {extra_rows}, v13")
    a.i(f"v_mul_u32_u24 v13, {pitch}, v13")
    a.i(f"v_lshl_add_u32 v{dst}, v11, 4, v13")

def loader_voff_T(a, dst, pitch):
    a.i("v_lshrrev_b32 v10, 3, v1")
    a.i("v_and_b32 v11, 7, v1")
    a.i("v_bfe_u32 v12, v10, 1, 1")
    a.i("v_lshlrev_b32 v12, 2, v12")
    a.i("v_xor_b32 v11, v11, v12")
    a.i(f"s_lshl_b32 s{S_T0}, s{S_LW}, 3")
    a.i(f"v_add_u32 v13, s{S_T0}, v10")
    a.i(f"v_mul_u32_u24 v13, {pitch}, v13")
    a.i(f"v_lshl_add_u32 v{dst}, v11, 4, v13")

def dma(a, voff, srdn, sbase, const, ldsconst):
    a.i(f"s_add_u32 m0, s{S_LDSW}, {ldsconst}")
    if const:
        a.i(f"s_add_u32 s{S_T1}, s{sbase}, {const}")
        so = S_T1
    else:
        so = sbase
    if not KN("NODMA", 0): a.i(f"buffer_load_dwordx4 v{voff}, {sr(srdn,4)}, s{so} offen lds")

S_KC = 90
S_ACUR = 91
S_WCUR = 92
def emit_loader(a, cfg, tail=None, tail_at=None):
    NK, S, BUF, TM, TN = cfg["NK"], cfg["S"], cfg["BUF"], cfg["TM"], cfg["TN"]
    nld = cfg.get("nld", 4); LEAD = min(KN("LEAD_" + cfg.get("name", "x"), cfg.get("LEAD", 2)), S - (2 if cfg.get("lazy", False) else 1)); NKH = cfg.get("NKH", NK)
    nA, nW = TM // 8 // nld, TN // 8 // nld
    PER = nA + nW
    order = []
    def issue(i):
        b = (i % S) * BUF
        half = i // NKH
        if i > 0:
            a.i(f"s_add_u32 s{S_KC}, s{S_KC}, 1"); a.i(f"s_cmp_eq_u32 s{S_KC}, {NKH}"); a.i(f"s_cselect_b32 s{S_KC}, 0, s{S_KC}")
        a.i(f"s_mul_i32 s{S_ACUR}, s{S_KC}, {cfg['kA']}"); a.i(f"s_add_u32 s{S_ACUR}, s{S_ACUR}, s{S_AB}")
        a.i(f"s_mul_i32 s{S_WCUR}, s{S_KC}, {cfg['kW']}"); a.i(f"s_add_u32 s{S_WCUR}, s{S_WCUR}, s{S_WB}")
        if "pre" in cfg: cfg["pre"](i)
        for j in range(nA):
            v, s_, c = cfg["acts"](i, nld * j)
            dma(a, v, s_, S_ACUR, c, b + nld * j * 1024)
        for j in range(nW):
            v, s_, c = cfg["wts"](i, nld * j)
            dma(a, v, s_, S_WCUR, c, b + TM * 128 + nld * j * 1024)
        order.append((i, PER))
    slack = [0]
    def after(c):
        idx = [k for k, (ch, n) in enumerate(order) if ch == c][0]
        return sum(n for ch, n in order[idx + 1:])
    stamp(a, 1)
    LEAD0 = min(KN("LEAD0", cfg.get("LEAD0", 2)), LEAD)
    for i in range(min(LEAD0, NK)): issue(i)
    stamp(a, 2)
    nxt = min(LEAD0, NK)
    tail_done = False
    for c in range(NK):
        n = after(c)
        assert n <= 63, n
        a.i(f"s_waitcnt vmcnt({n})")
        a.i("s_barrier")
        if c == 0: stamp(a, 3)
        if c == 5: stamp(a, 4)
        back = 2 if cfg.get("lazy", False) else 1
        lim = min(NK - 1, max(S - 1, c - back + S))
        lim = min(lim, c + LEAD)
        budget = 2
        while nxt <= lim and budget > 0:
            issue(nxt); nxt += 1; budget -= 1
        if tail and not tail_done and tail_at is not None and c == tail_at:
            tail(); tail_done = True
            order.append(("x", 0)); slack[0] = 2
        if nxt == NK and not tail_done and tail:
            order.append(("x", tail())); tail_done = True
    assert nxt == NK
    stamp(a, 5)

def idle_barriers(a, n):
    for _ in range(n): a.i("s_barrier")

def compute_addr_R(a, dst4, base_s=None, base_c=0):
    a.i("v_and_b32 v10, 31, v1")
    a.i("v_lshlrev_b32 v10, 7, v10")
    a.i("v_lshrrev_b32 v11, 5, v1")
    a.i("v_bfe_u32 v12, v1, 1, 3")
    a.i("v_xor_b32 v11, v11, v12")
    if base_s is not None: a.i(f"v_add_u32 v10, s{base_s}, v10")
    if base_c: a.i(f"v_add_u32 v10, {base_c}, v10")
    for s in range(4):
        a.i(f"v_xor_b32 v12, {2*s}, v11")
        a.i(f"v_lshl_add_u32 v{dst4+s}, v12, 4, v10")

def compute_addr_T0(a, dst):
    a.i("v_lshrrev_b32 v10, 5, v1")
    a.i("v_lshlrev_b32 v10, 3, v10")
    a.i("v_bfe_u32 v11, v1, 2, 2")
    a.i("v_add_u32 v10, v10, v11")
    a.i("v_lshlrev_b32 v10, 7, v10")
    a.i("v_bfe_u32 v11, v1, 3, 1")
    a.i("v_lshlrev_b32 v11, 6, v11")
    a.i("v_or_b32 v10, v10, v11")
    a.i("v_bfe_u32 v11, v1, 4, 1")
    a.i("v_lshlrev_b32 v11, 5, v11")
    a.i("v_or_b32 v10, v10, v11")
    a.i("v_bfe_u32 v11, v1, 1, 1")
    a.i("v_lshlrev_b32 v11, 4, v11")
    a.i("v_or_b32 v10, v10, v11")
    a.i("v_and_b32 v11, 1, v1")
    a.i("v_lshlrev_b32 v11, 3, v11")
    a.i(f"v_or_b32 v{dst}, v10, v11")

def addr_groups(S, BUF, max_imm):
    per = 1
    while per < S and per * BUF + max_imm < 65536: per += 1
    return per, (S + per - 1) // per

def emit_compute(a, cfg):
    NK, S, BUF = cfg["NK"], cfg["S"], cfg["BUF"]
    NTT, NTN = cfg["NTT"], cfg["NTN"]
    VA, VW, ACC, FR = cfg["VA"], cfg["VW"], cfg["ACC"], cfg["FR"]
    PD = KN("PD_" + cfg.get("name", "x"), cfg.get("PD", 2))
    lazy = cfg.get("lazy", False)
    assert PD <= 4
    NF = PD + 1
    wT = cfg["wfmt"] == "T"
    nW = NTN if wT else 4
    nreads = NTT + NTN * (2 if wT else 1)
    fsz = (NTT + NTN) * 4
    max_imm = max((NTT - 1) * 4096, 3 * 2048 + 512 if wT else max(cfg["woff"](nt) for nt in range(NTN)))
    per, ngrp = addr_groups(S, BUF, max_imm)
    for g in range(1, ngrp):
        for r in range(4): a.i(f"v_add_u32 v{VA + 4*g + r}, {g*per*BUF}, v{VA + r}")
        for r in range(nW): a.i(f"v_add_u32 v{VW + nW*g + r}, {g*per*BUF}, v{VW + r}")
    def fa(st, tt): return FR + (st % NF) * fsz + tt * 4
    def fw(st, nt): return FR + (st % NF) * fsz + NTT * 4 + nt * 4
    def acc(nt, tt): return ACC + (nt * NTT + tt) * 16
    def reads(st):
        s = st % 4
        b = (st // 4) % S
        g, bo = b // per, (b % per) * BUF
        out = []
        wl, al_ = [], []
        for tt in range(NTT):
            al_.append(f"ds_read_b128 {vr(fa(st,tt),4)}, v{VA+4*g+s} offset:{bo + tt*4096}")
        for nt in range(NTN):
            if wT:
                wl.append(f"ds_read_b64_tr_b16 {vr(fw(st,nt),2)}, v{VW+nW*g+nt} offset:{bo + s*2048}")
                wl.append(f"ds_read_b64_tr_b16 {vr(fw(st,nt)+2,2)}, v{VW+nW*g+nt} offset:{bo + s*2048+512}")
            else:
                wl.append(f"ds_read_b128 {vr(fw(st,nt),4)}, v{VW+4*g+s} offset:{bo + cfg['woff'](nt)}")
        return al_ + wl
    steps = NK * 4
    if cfg.get("premid"): cfg["premid"]()
    stamp(a, 1)
    a.i("s_barrier")
    stamp(a, 3)
    for st in range(PD):
        for r in reads(st): a.i(r)
    mf_per_step = NTN * NTT
    rpg = KN("RPG", 2)
    for j in range(steps):
        nxt = j + PD
        pend = reads(nxt) if nxt < steps else []
        if KN("NOCOMP", 0):
            if nxt < steps and nxt % 4 == 0: a.i("s_barrier")
            continue
        later = nreads * min(PD - 1, steps - 1 - j)
        if nxt < steps and nxt % 4 == 0:
            a.i(f"s_waitcnt lgkmcnt({min(15, later) if lazy else 0})")
            a.i("s_barrier")
        else:
            a.i(f"s_waitcnt lgkmcnt({min(15, later)})")
        if j == steps - KN("MIDBACK", 12) and cfg.get("mid"): cfg["mid"]()
        if j in cfg.get("at", {}): cfg["at"][j]()
        hook = cfg.get("step_hook")
        extra = hook(j, [fa(j, tt) for tt in range(NTT)], [fw(j, nt) for nt in range(NTN)]) if hook else []
        k = 0
        for nt in range(NTN):
            for tt in range(NTT):
                d = vr(acc(nt, tt), 16)
                c = "0" if j == 0 else d
                if cfg["orient"] == "nt":
                    a.i(f"v_mfma_f32_32x32x16_bf16 {d}, {vr(fw(j,nt),4)}, {vr(fa(j,tt),4)}, {c}")
                else:
                    a.i(f"v_mfma_f32_32x32x16_bf16 {d}, {vr(fa(j,tt),4)}, {vr(fw(j,nt),4)}, {c}")
                k += 1
                n = rpg if k < mf_per_step else len(pend)
                n = max(n, -(-len(pend) // (mf_per_step - k + 1)))
                for _ in range(min(n, len(pend))): a.i(pend.pop(0))
                ne = -(-len(extra) // (mf_per_step - k + 1))
                for _ in range(min(ne, len(extra))): a.i(extra.pop(0))
    stamp(a, 5)

K1C = -2.0 * math.sqrt(2.0 / math.pi) * math.log2(math.e)
K2C = K1C * 0.044715
def gelu_consts(a, sk):
    a.i(f"s_mov_b32 s{sk}, {fhex(K1C)}"); a.i(f"s_mov_b32 s{sk+1}, {fhex(K1C)}")
    a.i(f"s_mov_b32 s{sk+2}, {fhex(K2C)}"); a.i(f"s_mov_b32 s{sk+3}, {fhex(K2C)}")
    a.i(f"s_mov_b32 s{sk+4}, 0xffff0000")

def gelu_words(a, words, tmp, sk, vk1):
    n = len(words)
    X = [tmp + 4*i for i in range(n)]
    T = [tmp + 4*i + 2 for i in range(n)]
    for i, w in enumerate(words):
        a.i(f"v_lshlrev_b32 v{X[i]}, 16, v{w}")
        a.i(f"v_and_b32 v{X[i]+1}, s{sk+4}, v{w}")
    for i in range(n): a.i(f"v_pk_mul_f32 {vr(T[i],2)}, {vr(X[i],2)}, {vr(X[i],2)}")
    for i in range(n): a.i(f"v_pk_fma_f32 {vr(T[i],2)}, {vr(T[i],2)}, {sr(sk+2,2)}, {vr(vk1,2)}")
    for i in range(n): a.i(f"v_pk_mul_f32 {vr(T[i],2)}, {vr(T[i],2)}, {vr(X[i],2)}")
    for i in range(n):
        a.i(f"v_exp_f32 v{T[i]}, v{T[i]}"); a.i(f"v_exp_f32 v{T[i]+1}, v{T[i]+1}")
    for i in range(n): a.i(f"v_pk_add_f32 {vr(T[i],2)}, {vr(T[i],2)}, 1.0 op_sel_hi:[1,0]")
    for i in range(n):
        a.i(f"v_rcp_f32 v{T[i]}, v{T[i]}"); a.i(f"v_rcp_f32 v{T[i]+1}, v{T[i]+1}")
    for i in range(n): a.i(f"v_pk_mul_f32 {vr(T[i],2)}, {vr(T[i],2)}, {vr(X[i],2)}")
    for i, w in enumerate(words): a.i(f"v_cvt_pk_bf16_f32 v{w}, v{T[i]}, v{T[i]+1}")


DBG = {"on": False, "kidx": 0, "base": 0}
WS_DBG = 128 << 20
def stamp(a, idx):
    if not DBG["on"]: return
    a.i("s_memtime s[98:99]"); a.i("s_waitcnt lgkmcnt(0)")
    a.i(f"v_writelane_b32 v255, s98, {idx + DBG['base']}")
def dump_stamps(a):
    mega = DBG["base"] >= 48
    a.i("s_memtime s[98:99]"); a.i("s_waitcnt lgkmcnt(0)"); a.i(f"v_writelane_b32 v255, s98, {59 if mega else 15}")
    a.i("s_waitcnt vmcnt(0)")
    a.i("s_memtime s[98:99]"); a.i("s_waitcnt lgkmcnt(0)"); a.i(f"v_writelane_b32 v255, s98, {58 if mega else 14}")
    a.i("s_memrealtime s[98:99]"); a.i("s_waitcnt lgkmcnt(0)"); a.i(f"v_writelane_b32 v255, s98, {57 if mega else 13}")
    off = WS_DBG + DBG["kidx"] * 256 * 8 * 256
    a.i(f"s_add_u32 s84, s40, {off}"); a.i("s_addc_u32 s85, s41, 0"); a.i(f"s_mov_b32 s86, {256*8*256}"); a.i("s_mov_b32 s87, 0x20000")
    a.i("s_lshl_b32 s88, s2, 3"); a.i("s_add_u32 s88, s88, s3"); a.i("s_lshl_b32 s88, s88, 8")
    a.i("v_mbcnt_lo_u32_b32 v254, -1, 0"); a.i("v_mbcnt_hi_u32_b32 v254, -1, v254"); a.i("v_lshlrev_b32 v254, 2, v254")
    a.i("buffer_store_dword v255, v254, s[84:87], s88 offen")
```

```python
import sys
sys.path.insert(0, "gen")
from gen import *
import importlib
import gen as G
def build(kernels, out, dbg=False):
    a = Asm()
    metas = []
    G.DBG["on"] = dbg
    a.store_suffix = G.STF
    if dbg: a.end_hook = G.dump_stamps
    for ki, k in enumerate(kernels):
        G.DBG["kidx"] = ki
        mod = importlib.import_module(k)
        metas.append(getattr(mod, "gen_" + k)(a))
    hdr = open("cdna_kernels/" + NAME + ".s.ref").read().split("; Override launch")[0]
    txt = hdr
    for k, nwg, lds in metas:
        if k.startswith("recurrent"):
            txt += f"; @launch grid=({nwg},1,1) block=(512,1,1) lds={lds}\n"
        else:
            txt += f"; @launch kernel={k} grid=({nwg},1,1) block=({G.KBLOCK.get(k, 512)},1,1) lds={lds}\n"
    txt += '.amdgcn_target "amdgcn-amd-amdhsa--gfx950"\n.text\n'
    txt += a.text()
    txt += '.section .rodata,"a"\n'
    for k, nwg, lds in metas: txt += descriptor(k)
    open(out, "w").write(txt)
    print("wrote", out, "instrs", a.count, "nops", a.nops, "bytes", len(txt))
if __name__ == "__main__":
    args = sys.argv[2:]
    dbg = "dbg" in args
    build([x for x in args if x != "dbg"], sys.argv[1], dbg)
```
